```python
import torch

def _softmax(x, axis=-1):
    return torch.softmax(x, dim=axis)
def _gelu(x):
    return torch.nn.functional.gelu(x, approximate="tanh")
def _silu(x):
    return torch.nn.functional.silu(x)
def _sigmoid(x):
    return torch.sigmoid(x)
def _layernorm(x, axis=-1, eps=1e-5):
    m = x.mean(dim=axis, keepdim=True)
    v = x.var(dim=axis, keepdim=True, unbiased=False)
    return (x - m) / torch.sqrt(v + eps)
def _scatter_add(tgt, idx, src, axis=0):
    return tgt.clone().index_add_(axis, idx, src)
def _segment_sum(src, seg, n):
    out = torch.zeros((n,) + src.shape[1:], dtype=src.dtype)
    return out.index_add_(0, seg, src)
def _pad(x, pw):
    flat = tuple(v for pair in reversed(pw) for v in pair)
    return torch.nn.functional.pad(x, flat)

kernel_name = 'parallel_sum__ssm_conv_s4d__glu_gated_bilinear__prompt'

def setup_inputs():

    _w = (lambda a: (lambda t: t.to(torch.bfloat16) if t.is_floating_point() else t)(torch.as_tensor(a)))
    def _A_setup():
        Bsz, L, D, N = 1, 2048, 512, 128
        return {
            "u": _w((lambda *s: torch.randn(*s, dtype=torch.bfloat16) * 0.05)(Bsz, L, D)),
            "log_A_real": _w((lambda *s: torch.randn(*s, dtype=torch.bfloat16) * 3.2)(D, N) * 0.5),
            "A_imag": _w((lambda *s: torch.randn(*s, dtype=torch.bfloat16) * 0.05)(D, N) * 3.14),
            "C_real": _w((lambda *s: torch.randn(*s, dtype=torch.bfloat16) * 0.1)(D, N) / N ** 0.5),
            "C_imag": _w((lambda *s: torch.randn(*s, dtype=torch.bfloat16) * 0.2)(D, N) / N ** 0.5),
            "log_dt": _w((lambda *s: torch.randn(*s, dtype=torch.bfloat16) * 0.05)(D) * 0.5 - 4.0),
            "D_skip": _w((lambda *s: torch.randn(*s, dtype=torch.bfloat16) * 0.05)(D)),
        }
    _A_in = _A_setup()

    def _B_setup():
        B, S, D, F = 1, 2048, 512, 1376
        return {
            "x": _w((lambda *s: torch.randn(*s, dtype=torch.bfloat16) * 0.05)(B, S, D)),
            "w_gate": _w((lambda *s: torch.randn(*s, dtype=torch.bfloat16) * 0.4)(D, F) * (D ** -0.5)),
            "w_up": _w((lambda *s: torch.randn(*s, dtype=torch.bfloat16) * 0.4)(D, F) * (D ** -0.5)),
            "w_down": _w((lambda *s: torch.randn(*s, dtype=torch.bfloat16) * 0.4)(F, D) * (F ** -0.5)),
        }
    _B_in = _B_setup()

    return {
        "A_u": _A_in["u"],
        "A_log_A_real": _A_in["log_A_real"],
        "A_A_imag": _A_in["A_imag"],
        "A_C_real": _A_in["C_real"],
        "A_C_imag": _A_in["C_imag"],
        "A_log_dt": _A_in["log_dt"],
        "A_D_skip": _A_in["D_skip"],
        "B_x": _B_in["x"],
        "B_w_gate": _B_in["w_gate"],
        "B_w_up": _B_in["w_up"],
        "B_w_down": _B_in["w_down"],
    }

def reference(A_u, A_log_A_real, A_A_imag, A_C_real, A_C_imag, A_log_dt, A_D_skip, B_x, B_w_gate, B_w_up, B_w_down):
    def _A_ref(u, log_A_real, A_imag, C_real, C_imag, log_dt, D_skip):
        L = u.shape[1]
        dt = torch.exp(log_dt)
        A = -torch.exp(log_A_real) + 1j * A_imag
        C = (C_real + 1j * C_imag) * dt[:, None]
        pos = (lambda x, dt: x.to(dt))(torch.arange(L), log_dt.dtype)
        P = torch.exp((A * dt[:, None])[:, :, None] * pos[None, None, :])
        K = 2.0 * torch.einsum("dn,dnl->dl", C, P).real
        L2 = 2 * L
        u_t = (lambda x, *d: x.permute(*d))(u, 0, 2, 1)
        Kf = (lambda x, *a, **k: torch.fft.rfft(x.float(), *a, **k))(K, L2)
        Uf = (lambda x, *a, **k: torch.fft.rfft(x.float(), *a, **k))(u_t, L2)
        y = (lambda x, *a, **k: torch.fft.irfft(x, *a, **k).to(torch.bfloat16))(Uf * Kf[None, :, :], L2)[:, :, :L]
        y = (lambda x, *d: x.permute(*d))(y, 0, 2, 1)
        return y + u * D_skip[None, None, :]

    def _B_ref(x, w_gate, w_up, w_down):
        g = torch.einsum("bsd,df->bsf", x, w_gate)
        u = torch.einsum("bsd,df->bsf", x, w_up)
        h = g * u
        return torch.einsum("bsf,fd->bsd", h, w_down)

    x = A_u
    xn = _layernorm(x, axis=-1)
    return x + _A_ref(xn, A_log_A_real, A_A_imag, A_C_real, A_C_imag, A_log_dt, A_D_skip) + _B_ref(xn, B_w_gate, B_w_up, B_w_down)
```

```python
import re

def v(n, c=1):
    return f"v{n}" if c == 1 else f"v[{n}:{n+c-1}]"
def s(n, c=1):
    return f"s{n}" if c == 1 else f"s[{n}:{n+c-1}]"

_REG = re.compile(r"\b([vsa])(\d+)\b|\b([vsa])\[(\d+):(\d+)\]|\b(vcc_lo|vcc_hi|vcc|exec_lo|exec_hi|exec|m0|scc)\b")

def regs_of(tok):
    out = set()
    for m in _REG.finditer(tok):
        if m.group(1):
            out.add((m.group(1), int(m.group(2))))
        elif m.group(3):
            for i in range(int(m.group(4)), int(m.group(5)) + 1):
                out.add((m.group(3), i))
        else:
            n = m.group(6)
            if n.startswith("vcc"): out.add(("vcc", 0))
            elif n.startswith("exec"): out.add(("exec", 0))
            else: out.add((n, 0))
    return out

TRANS = ("v_exp_f32", "v_log_f32", "v_rcp_f32", "v_rsq_f32", "v_sqrt_f32", "v_sin_f32", "v_cos_f32", "v_rcp_iflag_f32")

class Ins:
    __slots__ = ("text", "op", "kind", "wr", "rd", "passes", "srcc", "dpp", "sdwa", "states", "storedata", "lds_dma")
    def __init__(self, text):
        self.text = text
        t = text.split(";")[0].strip()
        parts = t.split(None, 1)
        self.op = op = parts[0]
        rest = parts[1] if len(parts) > 1 else ""
        ops = [o.strip() for o in re.split(r",(?![^\[]*\])", rest)]
        self.wr = set(); self.rd = set(); self.passes = 0; self.srcc = set(); self.storedata = set()
        self.dpp = ("dpp" in op) or bool(re.search(r"\b(row_shr|row_shl|row_ror|quad_perm|row_mirror|row_half_mirror|row_bcast|wave_shr|wave_shl|row_newbcast)", rest))
        self.sdwa = "sdwa" in op
        self.lds_dma = False
        self.states = 1
        base = re.sub(r"_(e32|e64|dpp|sdwa)$", "", op)
        if op == "s_nop":
            self.kind = "nop"; self.states = int(rest, 0) + 1; return
        if op.startswith("v_mfma"):
            self.kind = "mfma"
            self.passes = 8 if "32x32x16" in op else 4 if "16x16x32" in op else 16
            self.wr = regs_of(ops[0]); self.rd = regs_of(ops[1]) | regs_of(ops[2]) | regs_of(ops[3])
            self.srcc = regs_of(ops[3]); return
        if op.startswith(("buffer_", "global_", "flat_")):
            self.kind = "vmem"
            lds = bool(re.search(r"\blds\b", rest)) or "load_lds" in op
            self.lds_dma = lds
            if "load" in op and not lds:
                self.wr = regs_of(ops[0]); self.rd = set().union(*[regs_of(o) for o in ops[1:]])
            elif "atomic" in op:
                self.rd = set().union(*[regs_of(o) for o in ops])
                if re.search(r"\bsc0\b", rest): self.wr = regs_of(ops[0])
            else:
                self.rd = set().union(*[regs_of(o) for o in ops])
                if "store" in op and ("x3" in op or "x4" in op):
                    self.storedata = regs_of(ops[1] if op.startswith("global_") else ops[0])
                    self.storedata = {r for r in self.storedata if r[0] == "v"}
            if lds: self.rd.add(("m0", 0))
            return
        if op.startswith("ds_"):
            self.kind = "ds"
            if "read" in op or "bpermute" in op or "permute" in op or "swizzle" in op:
                self.wr = regs_of(ops[0]); self.rd = set().union(*[regs_of(o) for o in ops[1:]])
            else:
                self.rd = set().union(*[regs_of(o) for o in ops])
            return
        if op.startswith("s_"):
            self.kind = "salu"
            if op.startswith(("s_waitcnt", "s_barrier", "s_branch", "s_cbranch", "s_endpgm", "s_setprio", "s_sleep")):
                return
            if op.startswith("s_cmp") or op.startswith("s_bitcmp"):
                self.rd = set().union(*[regs_of(o) for o in ops]); self.wr = {("scc", 0)}; return
            if op.startswith("s_load") or op.startswith("s_memtime") or op.startswith("s_memrealtime") or op.startswith("s_getreg"):
                self.kind = "smem"
                self.wr = regs_of(ops[0]); self.rd = set().union(*[regs_of(o) for o in ops[1:]]) if len(ops) > 1 else set(); return
            self.wr = regs_of(ops[0]); self.rd = set().union(*[regs_of(o) for o in ops[1:]])
            if "saveexec" in op: self.wr.add(("exec", 0)); self.rd.add(("exec", 0))
            return
        if op.startswith("v_"):
            self.kind = "valu"
            self.wr = regs_of(ops[0]); self.rd = set().union(*[regs_of(o) for o in ops[1:]]) if len(ops) > 1 else set()
            if base.startswith("v_cmp"):
                if "e32" in op or ops[0] == "vcc": self.wr = {("vcc", 0)}
            if base in ("v_cndmask_b32",) and len(ops) == 3: self.rd.add(("vcc", 0))
            if base in ("v_addc_co_u32", "v_subb_co_u32", "v_add_co_u32", "v_sub_co_u32", "v_subbrev_co_u32", "v_subrev_co_u32"):
                self.wr |= regs_of(ops[1]);
            if base.startswith("v_permlane") and "swap" in base:
                self.wr |= regs_of(ops[1]); self.rd |= regs_of(ops[0])
            if base in ("v_fmac_f32", "v_dot2c_f32_bf16", "v_mac_f32", "v_writelane_b32") or self.sdwa or self.dpp:
                self.rd |= regs_of(ops[0])
            return
        raise ValueError("unknown instr: " + text)

def is_trans(i): return i.kind == "valu" and re.sub(r"_(e32|e64)$", "", i.op) in TRANS
def is_dot(i): return i.kind == "valu" and i.op.startswith("v_dot")
def is_perm(i): return i.kind == "valu" and i.op.startswith("v_permlane")
def is_rl(i): return i.kind == "valu" and i.op.startswith(("v_readlane", "v_readfirstlane"))
def vg(rs): return {r for r in rs if r[0] in "va" and len(r[0]) == 1}
def sg(rs): return {r for r in rs if r[0] in ("s", "vcc")}

def need(p, c):
    n = 0
    if p.kind == "valu":
        psg = sg(p.wr)
        if psg:
            if c.kind == "vmem" and psg & c.rd: n = max(n, 5)
            if c.kind == "valu" and psg & c.rd: n = max(n, 4 if c.op.startswith(("v_readlane", "v_writelane")) else 2)
            if c.kind == "salu" and psg & c.rd: n = max(n, 1)
        pv = vg(p.wr)
        if pv:
            if c.kind == "valu" and c.dpp and pv & c.rd: n = max(n, 2)
            if is_perm(c) and pv & (c.rd | c.wr): n = max(n, 2)
            if is_rl(c) and pv & c.rd: n = max(n, 1)
            if c.kind == "mfma" and pv & c.rd: n = max(n, 2)
            if is_trans(p) and c.kind == "valu" and not is_trans(c) and pv & c.rd: n = max(n, 1)
            if is_trans(p) and c.kind in ("vmem", "ds") and pv & c.rd: n = max(n, 1)
            if (p.sdwa or ("op_sel" in p.text and not p.op.startswith("v_pk"))) and c.kind == "valu" and pv & (c.rd | c.wr): n = max(n, 1)
            if is_dot(p) and c.kind in ("valu", "mfma", "vmem", "ds") and pv & (c.rd | c.wr):
                if c.op == p.op:
                    toks = [o.strip() for o in re.split(r",(?![^\[]*\])", c.text.split(None, 1)[1])]
                    ab = regs_of(toks[1]) | regs_of(toks[2])
                    if pv & ab: n = max(n, 3)
                else: n = max(n, 3)
        if ("exec", 0) in p.wr:
            if c.kind == "valu" and c.dpp: n = max(n, 5)
            if c.kind == "mfma": n = max(n, 4)
    if p.kind == "salu" and ("m0", 0) in p.wr and c.lds_dma: n = max(n, 1)
    if p.kind == "vmem" and p.storedata and vg(c.wr) & p.storedata:
        n = max(n, 2 if c.kind == "valu" else 1)
    if p.kind == "mfma":
        P = p.passes
        t_ov = {4: 6, 8: 10, 16: 18}[P]; t_rw = {4: 8, 8: 12, 16: 20}[P]; t_war = {4: 3, 8: 7, 16: 15}[P]
        if c.kind == "mfma":
            toks = [o.strip() for o in re.split(r",(?![^\[]*\])", c.text.split(";")[0].split(None, 1)[1])]
            ab = regs_of(toks[1]) | regs_of(toks[2])
            if p.wr & ab: n = max(n, t_rw)
            if p.wr & c.srcc and not (p.wr == c.srcc and p.passes == c.passes): n = max(n, t_ov)
            if p.wr & c.wr and not (p.wr == c.wr and p.passes == c.passes): n = max(n, t_ov)
        else:
            if p.wr & (c.rd | c.wr): n = max(n, t_rw)
            if c.kind == "valu" and p.srcc & c.wr: n = max(n, t_war)
    return n

class Asm:
    def __init__(self):
        self.items = []
    def __call__(self, text):
        for ln in text.strip("\n").split("\n"):
            ln = ln.strip()
            if not ln: continue
            if ln.startswith(";"): self.items.append(("raw", "  " + ln)); continue
            if ln.endswith(":") or ln.startswith("."): self.items.append(("label" if ln.endswith(":") else "raw", ln)); continue
            self.items.append(("ins", ln))
    def raw(self, text): self.items.append(("raw", text))
    def label(self, l): self.items.append(("label", l + ":"))
    def render(self):
        out = []; hist = []
        npad = 0
        for kind, text in self.items:
            if kind == "raw": out.append(text); continue
            if kind == "label":
                out.append(text)
                continue
            ins = Ins(text)
            req = 0; dist = 0
            for p in reversed(hist):
                if dist >= 20: break
                n = need(p, ins)
                if n > dist: req = max(req, n - dist)
                dist += p.states
            while req > 0:
                k = min(req, 16)
                nop = Ins(f"s_nop {k-1}"); out.append(f"  s_nop {k-1}"); hist.append(nop); req -= k; npad += 1
            out.append("  " + text); hist.append(ins)
            if len(hist) > 64: hist = hist[-32:]
            if ins.op in ("s_branch", "s_endpgm"): hist = []
        return "\n".join(out) + "\n"
```

```python
from gen import *

S_RB, S_CB = 47, 48
XL = 49152
def g1_map(a):
    a(f"""
    s_and_b32 s3, s{S_J}, 7
    s_lshr_b32 s4, s{S_J}, 3
    s_and_b32 s5, s3, 1
    s_lshl_b32 s5, s5, 3
    s_and_b32 s6, s4, 7
    s_add_u32 s{S_RB}, s5, s6
    s_lshr_b32 s5, s3, 1
    s_lshl_b32 s5, s5, 2
    s_lshr_b32 s6, s4, 3
    s_add_u32 s{S_CB}, s5, s6
    """)

def g1_role(a, skip_label, fused=False):
    SRDX, SRDW = 52, 56
    sWM, sWN = 60, 61
    sXoff, sWoff = 62, 63
    sMX, sMW = 64, 65
    sST = 66
    sH = 68
    vAad = [4, 5, 6]; vBad = [7, 8, 9, 10]; vXo = [11, 12, 13, 14]; vWo = [15, 16, 17]
    vCS = [18, 19, 20]; vST = [22, 24]
    vT = 26
    AF = [32, 44]
    BF = [56, 88]
    ACC = 128
    CSV = 56
    g1_map(a)
    a(f"s_cmp_ge_u32 s{S_CB}, 15")
    a(f"s_cbranch_scc1 {skip_label}")
    a(f"""
    s_and_b32 s{sWM}, s{S_WAVE}, 1
    s_lshr_b32 s{sWN}, s{S_WAVE}, 1
    s_waitcnt lgkmcnt(0)
    s_lshl_b32 s3, s{S_RB}, 17
    s_add_u32 s{SRDX}, s{S_X}, s3
    s_addc_u32 s{SRDX+1}, s{S_X+1}, 0
    s_and_b32 s{SRDX+1}, s{SRDX+1}, 0xffff
    s_mov_b32 s{SRDX+2}, 0x20000
    s_mov_b32 s{SRDX+3}, 0x20000
    s_cmp_eq_u32 s{sWM}, 0
    s_cselect_b32 s{SRDW}, s{S_WG}, s{S_WU}
    s_cselect_b32 s{SRDW+1}, s{S_WG+1}, s{S_WU+1}
    s_mul_i32 s3, s{S_CB}, 192
    s_add_u32 s{SRDW}, s{SRDW}, s3
    s_addc_u32 s{SRDW+1}, s{SRDW+1}, 0
    s_and_b32 s{SRDW+1}, s{SRDW+1}, 0xffff
    s_sub_u32 s{SRDW+2}, {512*2752}, s3
    s_mov_b32 s{SRDW+3}, 0x20000
    """)
    a(f"""
    v_lshrrev_b32 v{vT}, 3, v1             ; r
    v_and_b32 v{vT+1}, 7, v1               ; p
    v_lshrrev_b32 v{vT+2}, 1, v{vT}        ; r>>1
    v_xor_b32 v{vT+3}, v{vT+1}, v{vT+2}    ; p ^ (r>>1)
    v_lshlrev_b32 v{vT+4}, 10, v{vT}       ; r*1024
    """)
    for ii in range(4):
        a(f"v_xor_b32 v{vT+5}, {4*(ii&1)}, v{vT+3}")
        a(f"v_lshlrev_b32 v{vT+5}, 4, v{vT+5}")
        a(f"v_add3_u32 v{vXo[ii]}, v{vT+4}, v{vT+5}, {ii*8192}" if ii == 0 else f"v_add_u32 v{vXo[ii]}, v{vT+4}, v{vT+5}")
        if ii > 0: a(f"v_add_u32 v{vXo[ii]}, {ii*8192}, v{vXo[ii]}")
    a(f"s_lshl_b32 s3, s{sWM}, 1")
    for i in range(3):
        a(f"""
        v_add_u32 v{vT}, {64*i}, v1
        v_mul_u32_u24 v{vT+1}, 0x5556, v{vT}
        v_lshrrev_b32 v{vT+1}, 18, v{vT+1}      ; row = u/12  (u*21846>>18)
        v_mul_u32_u24 v{vT+2}, 12, v{vT+1}
        v_sub_u32 v{vT+2}, v{vT}, v{vT+2}       ; pos
        v_xor_b32 v{vT+2}, s3, v{vT+2}
        v_lshlrev_b32 v{vT+2}, 4, v{vT+2}
        v_mul_u32_u24 v{vT+1}, 2752, v{vT+1}
        v_add_u32 v{vWo[i]}, v{vT+1}, v{vT+2}
        """)
    a(f"""
    s_lshl_b32 s{sXoff}, s{S_WAVE}, 15          ; w*4*8192
    s_mul_i32 s{sWoff}, s{sWN}, {16*2752}       ; ks = w>>1
    s_lshl_b32 s{sMX}, s{S_WAVE}, 12            ; w*4*1024
    s_add_u32 s{sMX}, s{sMX}, {XL}
    s_mul_i32 s{sMW}, s{sWN}, 6144
    s_mul_i32 s3, s{sWM}, 3072
    s_add_u32 s{sMW}, s{sMW}, s3
    """)
    issued = []
    def issue(stage):
        st = stage + 3
        if st < 16:
            for i in range(3):
                a(f"s_add_u32 m0, s{sMW}, {(st % 4) * 12288 + i * 1024}")
                a(f"buffer_load_dwordx4 v{vWo[i]}, s[{SRDW}:{SRDW+3}], s{sWoff} offen lds")
                issued.append(stage)
            a(f"s_add_u32 s{sWoff}, s{sWoff}, {32*2752}")
        if stage % 2 != 0 and st // 2 < 8:
            c = st // 2
            for ii in range(4):
                a(f"s_add_u32 m0, s{sMX}, {(c % 2) * 16384 + ii * 1024}")
                a(f"buffer_load_dwordx4 v{vXo[ii]}, s[{SRDX}:{SRDX+3}], s{sXoff} offen lds")
                issued.append(stage)
            a(f"s_add_u32 s{sXoff}, s{sXoff}, 128")
    issue(-3); issue(-2); issue(-1)
    a(f"""
    v_bfe_u32 v{vT}, v1, 4, 1              ; mat
    v_lshrrev_b32 v{vT+1}, 5, v1           ; hh
    v_bfe_u32 v{vT+2}, v1, 2, 2            ; r
    v_lshl_add_u32 v{vT+2}, v{vT+1}, 3, v{vT+2}   ; 8hh + r
    v_mul_u32_u24 v{vT+2}, 192, v{vT+2}
    v_mul_u32_u24 v{vT+3}, 3072, v{vT}
    v_add_u32 v{vT+2}, v{vT+2}, v{vT+3}
    v_bfe_u32 v{vT+3}, v1, 1, 1            ; c>>1
    v_lshlrev_b32 v{vT+3}, 4, v{vT+3}
    v_and_b32 v{vT+4}, 1, v1
    v_lshlrev_b32 v{vT+4}, 3, v{vT+4}
    v_add3_u32 v{vT+2}, v{vT+2}, v{vT+3}, v{vT+4}
    s_mul_i32 s3, s{sWM}, 3
    """)
    for j in range(3):
        a(f"""
        s_add_u32 s4, s3, {j}
        v_xor_b32 v{vT+3}, s4, v{vT}
        v_lshl_add_u32 v{vAad[j]}, v{vT+3}, 5, v{vT+2}
        """)
    a(f"""
    v_and_b32 v{vT}, 31, v1
    v_bfe_u32 v{vT+2}, v{vT}, 1, 3
    s_lshl_b32 s3, s{sWN}, 13
    s_add_u32 s3, s3, {XL}
    v_lshlrev_b32 v{vT+3}, 7, v{vT}
    v_add_u32 v{vT+3}, s3, v{vT+3}
    """)
    for ks in range(4):
        a(f"""
        v_add_u32 v{vT+4}, {2*ks}, v{vT+1}
        v_xor_b32 v{vT+4}, v{vT+4}, v{vT+2}
        v_lshl_add_u32 v{vBad[ks]}, v{vT+4}, 4, v{vT+3}
        """)
    ws_base(a, sST, WS_STATS)
    a(f"""
    s_lshl_b32 s3, s{S_RB}, 7
    s_lshl_b32 s4, s{sWN}, 6
    s_add_u32 s3, s3, s4
    v_add_u32 v{vT+4}, s3, v{vT}
    v_lshlrev_b32 v{vT+4}, 3, v{vT+4}
    """)
    def stats_load():
        a(f"global_load_dwordx2 v[{vST[0]}:{vST[0]+1}], v{vT+4}, s[{sST}:{sST+1}] sc1")
        a(f"global_load_dwordx2 v[{vST[1]}:{vST[1]+1}], v{vT+4}, s[{sST}:{sST+1}] offset:256 sc1")
        issued.append(99); issued.append(99)
    def acc(j, jn): return ACC + (j * 2 + jn) * 16
    def mfmas(t):
        A = AF[t % 2]; B = BF[(t // 4) % 2] + (t % 4) * 8
        for j in range(3):
            for jn in range(2):
                d = acc(j, jn)
                c = "0" if t == 0 else f"v[{d}:{d+15}]"
                a(f"v_mfma_f32_32x32x16_bf16 v[{d}:{d+15}], v[{A+4*j}:{A+4*j+3}], v[{B+4*jn}:{B+4*jn+3}], {c}")
            for k in range(2 * 0, 4):
                c = "0" if (t == 0 and k == 0) else f"v{vCS[j]}"
                a(f"v_dot2_f32_bf16 v{vCS[j]}, v{A+4*j+k}, s{S_ONES}, {c}")
    def reads(t):
        st = t // 2; A = AF[t % 2]
        if t % 4 == 0:
            c = t // 4; Bb = BF[c % 2]
            for jn in range(2):
                a(f"ds_read_b128 v[{Bb+4*jn}:{Bb+4*jn+3}], v{vBad[0]} offset:{(c%2)*16384 + jn*4096}")
        base = (st % 4) * 12288 + (t % 2) * 6144
        for j in range(3):
            a(f"ds_read_b64_tr_b16 v[{A+4*j}:{A+4*j+1}], v{vAad[j]} offset:{base}")
            a(f"ds_read_b64_tr_b16 v[{A+4*j+2}:{A+4*j+3}], v{vAad[j]} offset:{base+768}")
        if t % 4 == 0:
            for ks in range(1, 4):
                for jn in range(2):
                    a(f"ds_read_b128 v[{Bb+8*ks+4*jn}:{Bb+8*ks+4*jn+3}], v{vBad[ks]} offset:{(c%2)*16384 + jn*4096}")
    for t in range(32):
        if t % 2 == 0:
            st = t // 2
            allowed = sum(1 for x in issued if x >= st - 2)
            a(f"s_waitcnt vmcnt({allowed}) lgkmcnt(0)")
            a("s_barrier")
            issue(st)
            if st == 12: stats_load()
        else:
            a("s_waitcnt lgkmcnt(0)")
        reads(t)
        if t > 0: mfmas(t - 1)
    a("s_waitcnt lgkmcnt(0)")
    mfmas(31)
    for j in range(3):
        a(f"v_mov_b32 v{vT+j}, v{vCS[j]}")
    for j in range(3):
        a(f"v_permlane32_swap_b32 v{vCS[j]}, v{vT+j}")
    for j in range(3):
        a(f"v_add_f32 v{vCS[j]}, v{vCS[j]}, v{vT+j}")
    a(f"""
    s_lshl_b32 s3, s{S_WAVE}, 9
    v_and_b32 v{vT}, 31, v1
    v_lshlrev_b32 v{vT}, 2, v{vT}
    v_add_u32 v{vT}, s3, v{vT}
    v_lshrrev_b32 v{vT+1}, 5, v1
    v_lshlrev_b32 v{vT+1}, 4, v{vT+1}
    v_add_u32 v{vT+1}, s3, v{vT+1}
    """)
    for j in range(3):
        a(f"ds_write_b32 v{vT}, v{vCS[j]} offset:{j*128}")
    a("s_waitcnt lgkmcnt(0)")
    for j in range(3):
        for g in range(4):
            a(f"ds_read_b128 v[{CSV+j*16+4*g}:{CSV+j*16+4*g+3}], v{vT+1} offset:{j*128+g*32}")
    ws_base(a, sH, WS_H)
    a(f"""
    s_lshl_b32 s3, s{S_RB}, 2
    s_lshl_b32 s4, s{sWN}, 1
    s_add_u32 s3, s3, s4
    s_mul_i32 s3, s3, 86
    s_mul_i32 s4, s{S_CB}, 6
    s_add_u32 s3, s3, s4
    s_mul_i32 s5, s{sWM}, 3
    s_add_u32 s4, s4, s5          ; ft0
    s_add_u32 s3, s3, s5
    s_lshl_b32 s3, s3, 10
    v_lshlrev_b32 v{vT+2}, 4, v1
    v_add_u32 v{vT+2}, s3, v{vT+2}
    s_waitcnt vmcnt(0) lgkmcnt(0)
    """)
    for jn in range(2):
        a(f"v_mul_f32 v{vT+3+jn}, v{vST[jn]+1}, v{vST[jn]+1}")
    for j in range(3):
        a(f"s_add_u32 s5, s4, {j}")
        a(f"s_cmp_ge_u32 s5, 86")
        a(f"s_cbranch_scc1 L_g1_skip{j}")
        for jn in range(2):
            d = acc(j, jn); cs = CSV + j * 16; st = vST[jn]
            for i in range(0, 16, 2):
                a(f"v_pk_fma_f32 v[{d+i}:{d+i+1}], v[{cs+i}:{cs+i+1}], v[{st}:{st+1}], v[{d+i}:{d+i+1}] op_sel_hi:[1,0,1] neg_lo:[0,1,0] neg_hi:[0,1,0]")
            for i in range(0, 8, 2):
                a(f"v_pk_mul_f32 v[{d+i}:{d+i+1}], v[{d+i}:{d+i+1}], v[{d+i+8}:{d+i+9}]")
            r2 = vT + 3 + jn
            for i in range(0, 8):
                a(f"v_mul_f32 v{d+i}, v{d+i}, v{r2}")
            for i in range(4):
                a(f"v_cvt_pk_bf16_f32 v{d+8+i}, v{d+2*i}, v{d+2*i+1}")
            off = jn * 86 * 1024 + j * 1024
            a(f"v_add_u32 v{vT+5}, {off}, v{vT+2}")
            a(f"global_store_dwordx4 v{vT+5}, v[{d+8}:{d+11}], s[{sH}:{sH+1}] sc1")
        a.label(f"L_g1_skip{j}")
```

```python
from gen import *

S_RT, S_CT = 47, 48
TB = 65536
NS = 22
DEP = 8

def g2_map(a):
    a(f"""
    s_and_b32 s3, s{S_J}, 7
    s_lshr_b32 s4, s{S_J}, 3
    s_lshl_b32 s3, s3, 2
    s_lshr_b32 s5, s4, 3
    s_add_u32 s{S_RT}, s3, s5
    s_and_b32 s{S_CT}, s4, 7
    """)

class VQ:
    def __init__(self): self.q = []
    def add(self, tag): self.q.append(tag)
    def after(self, tags):
        last = max(i for i, t in enumerate(self.q) if t in tags)
        return len(self.q) - 1 - last

def g2_role(a, fused=False, sc=""):
    SRDW, SRDH = 52, 56
    sWoff, sHoff, sLB, sAO = 60, 61, 62, 64
    vWo = [4, 5]; vHo = [6, 7]; vA = [8, 9]; vXo = 10; vTw = 11; vT = 12
    XD = 16; AOD = 24
    AF = [32, 40]; HR = 48; ACC = 112
    g2_map(a)
    a(f"""
    s_waitcnt lgkmcnt(0)
    s_lshl_b32 s3, s{S_CT}, 7
    s_add_u32 s{SRDW}, s{S_WD}, s3
    s_addc_u32 s{SRDW+1}, s{S_WD+1}, 0
    s_and_b32 s{SRDW+1}, s{SRDW+1}, 0xffff
    s_sub_u32 s{SRDW+2}, {1376*1024}, s3
    s_mov_b32 s{SRDW+3}, 0x20000
    s_mul_i32 s3, s{S_RT}, {2*86*1024}
    s_add_u32 s3, s3, {WS_H:#x}
    s_add_u32 s{SRDH}, s{S_WS}, s3
    s_addc_u32 s{SRDH+1}, s{S_WS+1}, 0
    s_and_b32 s{SRDH+1}, s{SRDH+1}, 0xffff
    s_mov_b32 s{SRDH+2}, {2*86*1024}
    s_mov_b32 s{SRDH+3}, 0x20000
    s_mul_i32 s3, s{S_WAVE}, 22
    s_cmp_ge_u32 s{S_WAVE}, 2
    s_subb_u32 s3, s3, 0
    s_cmp_ge_u32 s{S_WAVE}, 3
    s_subb_u32 s3, s3, 0
    s_lshl_b32 s{sWoff}, s3, 14
    s_lshl_b32 s{sHoff}, s3, 10
    s_lshl_b32 s{sLB}, s{S_WAVE}, 14
    ; DMA lane offsets: row=lane/8, piece=(lane%8)^(4*((row>>1)&1))
    v_lshrrev_b32 v{vT}, 3, v1
    v_and_b32 v{vT+1}, 7, v1
    v_bfe_u32 v{vT+2}, v1, 4, 1
    v_lshlrev_b32 v{vT+2}, 2, v{vT+2}
    v_xor_b32 v{vT+1}, v{vT+1}, v{vT+2}
    v_lshlrev_b32 v{vT+1}, 4, v{vT+1}
    v_lshl_add_u32 v{vWo[0]}, v{vT}, 10, v{vT+1}
    v_add_u32 v{vWo[1]}, 8192, v{vWo[0]}
    v_lshlrev_b32 v{vHo[0]}, 4, v1
    v_add_u32 v{vHo[1]}, {86*1024}, v{vHo[0]}
    """)
    q = VQ()
    def issue(st):
        if st >= NS: return
        for ii in range(2):
            a(f"s_add_u32 m0, s{sLB}, {(st % DEP) * 2048 + ii * 1024}")
            a(f"buffer_load_dwordx4 v{vWo[ii]}, s[{SRDW}:{SRDW+3}], s{sWoff} offen lds")
            q.add(("W", st))
        for nt in range(2):
            r = HR + (st % DEP) * 8 + nt * 4
            a(f"buffer_load_dwordx4 v[{r}:{r+3}], v{vHo[nt]}, s[{SRDH}:{SRDH+3}], s{sHoff} offen{sc}")
            q.add(("H", st))
    def adv():
        a(f"s_add_u32 s{sWoff}, s{sWoff}, 16384")
        a(f"s_add_u32 s{sHoff}, s{sHoff}, 1024")
    a(f"s_cmp_ge_u32 s{S_WAVE}, 2")
    a("s_cbranch_scc1 L_g2_sk0")
    issue(0)
    a.label("L_g2_sk0")
    adv()
    for st in range(1, DEP):
        issue(st); adv()
    a(f"""
    v_and_b32 v{vT}, 15, v1
    v_lshrrev_b32 v{vT+1}, 4, v1
    s_lshl_b32 s3, s{S_RT}, 6
    s_lshl_b32 s4, s{S_WAVE}, 4
    s_add_u32 s3, s3, s4
    s_lshl_b32 s3, s3, 10
    s_lshl_b32 s4, s{S_CT}, 7
    s_add_u32 s3, s3, s4
    v_lshlrev_b32 v{vXo}, 10, v{vT}
    v_lshl_add_u32 v{vXo}, v{vT+1}, 4, v{vXo}
    v_add_u32 v{vXo}, s3, v{vXo}
    global_load_dwordx4 v[{XD}:{XD+3}], v{vXo}, s[{S_X}:{S_X+1}]
    global_load_dwordx4 v[{XD+4}:{XD+7}], v{vXo}, s[{S_X}:{S_X+1}] offset:64
    """)
    q.add("x"); q.add("x")
    a(f"""
    v_bfe_u32 v{vT}, v1, 2, 2              ; r
    v_lshrrev_b32 v{vT+1}, 5, v1           ; hh
    v_lshl_add_u32 v{vT+1}, v{vT+1}, 2, v{vT}
    v_lshlrev_b32 v{vT+1}, 7, v{vT+1}      ; row*128
    v_bfe_u32 v{vT+2}, v1, 4, 1            ; mhalf
    v_lshlrev_b32 v{vT+2}, 5, v{vT+2}      ; mhalf*32
    v_and_b32 v{vT+3}, 3, v1
    v_lshlrev_b32 v{vT+3}, 3, v{vT+3}      ; c*8
    v_add3_u32 v{vT+1}, v{vT+1}, v{vT+2}, v{vT+3}
    v_add_u32 v{vT+1}, s{sLB}, v{vT+1}
    v_bfe_u32 v{vT+2}, v1, 3, 1            ; rb = (r>>1)&1
    v_lshlrev_b32 v{vT+2}, 6, v{vT+2}      ; rb*64
    v_add_u32 v{vA[0]}, v{vT+1}, v{vT+2}
    v_xor_b32 v{vT+2}, 64, v{vT+2}
    v_add_u32 v{vA[1]}, v{vT+1}, v{vT+2}
    """)
    for i in range(64):
        a(f"v_mov_b32 v{ACC+i}, 0")
    def ao_load():
        ws_base(a, sAO, WS_AO)
        a(f"""
        v_lshrrev_b32 v{vT}, 3, v0
        v_and_b32 v{vT+1}, 7, v0
        s_lshl_b32 s3, s{S_CT}, 18            ; d0*4096
        s_lshl_b32 s4, s{S_RT}, 7
        s_add_u32 s3, s3, s4
        v_lshlrev_b32 v{vTw}, 12, v{vT}
        v_lshl_add_u32 v{vTw}, v{vT+1}, 4, v{vTw}
        v_add_u32 v{vTw}, s3, v{vTw}
        global_load_dwordx4 v[{AOD}:{AOD+3}], v{vTw}, s[{sAO}:{sAO+1}]{sc}
        v_add_u32 v{vTw}, {32*4096}, v{vTw}
        global_load_dwordx4 v[{AOD+4}:{AOD+7}], v{vTw}, s[{sAO}:{sAO+1}]{sc}
        v_mul_u32_u24 v{vTw}, 144, v{vT}
        v_lshl_add_u32 v{vTw}, v{vT+1}, 4, v{vTw}
        v_add_u32 v{vTw}, {TB}, v{vTw}
        """)
        q.add("ao"); q.add("ao")
    def reads(st):
        A = AF[st % 2]
        for mt in range(2):
            a(f"ds_read_b64_tr_b16 v[{A+4*mt}:{A+4*mt+1}], v{vA[mt]} offset:{(st % DEP) * 2048}")
            a(f"ds_read_b64_tr_b16 v[{A+4*mt+2}:{A+4*mt+3}], v{vA[mt]} offset:{(st % DEP) * 2048 + 1024}")
    def mfmas(st):
        A = AF[st % 2]; H = HR + (st % DEP) * 8
        for mt in range(2):
            for nt in range(2):
                d = ACC + (mt * 2 + nt) * 16
                a(f"v_mfma_f32_32x32x16_bf16 v[{d}:{d+15}], v[{A+4*mt}:{A+4*mt+3}], v[{H+4*nt}:{H+4*nt+3}], v[{d}:{d+15}]")
    a(f"s_cmp_ge_u32 s{S_WAVE}, 2")
    a("s_cbranch_scc1 L_g2_sk1")
    a(f"s_waitcnt vmcnt({q.after([('W', 0)])})")
    reads(0)
    a.label("L_g2_sk1")
    for t in range(NS):
        need = [("H", t)] + ([("W", t + 1)] if t + 1 < NS else [])
        a(f"s_waitcnt vmcnt({q.after(need)}) lgkmcnt(0)")
        if t in (0, 1, 8, 16): stamp(a, f"t{t}")
        if t + 1 < NS: reads(t + 1)
        if t == 0:
            a(f"s_cmp_ge_u32 s{S_WAVE}, 2")
            a("s_cbranch_scc1 L_g2_sk2")
            mfmas(0)
            a.label("L_g2_sk2")
        else:
            mfmas(t)
        if t + DEP < NS:
            issue(t + DEP); adv()
        if t + DEP == NS: ao_load()
    stamp(a, "loopend")
    a(f"""
    v_and_b32 v{vT}, 31, v1               ; n
    v_lshrrev_b32 v{vT+1}, 5, v1          ; hh
    v_and_b32 v{vT+2}, 15, v1
    v_xor_b32 v{vT+2}, v{vT+2}, v{vT+1}
    v_lshlrev_b32 v{vT+2}, 4, v{vT+2}
    v_lshl_add_u32 v{vT+2}, v{vT}, 8, v{vT+2}
    v_add_u32 v{vT+2}, s{sLB}, v{vT+2}
    """)
    for mt in range(2):
        for g in range(4):
            t = vT + 3 if (g & 1) else vT
            a(f"v_xor_b32 v{t}, {(8*mt + 2*g) << 4}, v{vT+2}")
            for nt in range(2):
                d = ACC + (mt * 2 + nt) * 16 + 4 * g
                a(f"ds_write_b128 v{t}, v[{d}:{d+3}] offset:{nt*8192}")
    a(f"s_waitcnt vmcnt(0)")
    a(f"ds_write_b128 v{vTw}, v[{AOD}:{AOD+3}]")
    a(f"ds_write_b128 v{vTw}, v[{AOD+4}:{AOD+7}] offset:{32*144}")
    a("s_waitcnt lgkmcnt(0)")
    a("s_barrier")
    stamp(a, "bar")
    P = 48
    AOT = 32
    a(f"""
    v_and_b32 v{vT}, 15, v1               ; i
    v_lshrrev_b32 v{vT+1}, 4, v1          ; g4
    s_lshl_b32 s3, s{S_WAVE}, 4
    v_add_u32 v{vT+2}, s3, v{vT}          ; l
    v_lshlrev_b32 v{vT+2}, 8, v{vT+2}
    v_lshlrev_b32 v{vT+3}, 1, v{vT+1}
    v_xor_b32 v{vT+3}, v{vT+3}, v{vT}
    v_lshl_add_u32 v{vT+2}, v{vT+3}, 4, v{vT+2}
    ; T address
    v_bfe_u32 v{vT+3}, v1, 2, 2           ; r
    v_lshl_add_u32 v{vT+3}, v{vT+1}, 3, v{vT+3}   ; 8 g4 + r
    v_mul_u32_u24 v{vT+3}, 144, v{vT+3}
    v_and_b32 v{vT}, 3, v1
    v_lshlrev_b32 v{vT}, 3, v{vT}
    s_lshl_b32 s3, s{S_WAVE}, 5
    s_add_u32 s3, s3, {TB}
    v_add3_u32 v{vT+3}, v{vT+3}, v{vT}, s3
    """)
    for p in range(2):
        for qq in range(2):
            a(f"ds_read_b64_tr_b16 v[{AOT+(2*p+qq)*2}:{AOT+(2*p+qq)*2+1}], v{vT+3} offset:{(32*p + 4*qq)*144}")
    for p in range(2):
        for qq in range(2):
            t = vT if (qq & 1) else vT + 1
            a(f"v_xor_b32 v{t}, {(8*p + qq) << 4}, v{vT+2}")
            for w in range(4):
                r = P + (2*p+qq)*16 + w*4
                a(f"ds_read_b128 v[{r}:{r+3}], v{t} offset:{w*16384}")
    E = 112
    for p in range(2):
        for qq in range(2):
            k = 2*p + qq
            a(f"s_waitcnt lgkmcnt({min(15, 4*(3-k))})")
            r = P + k*16
            for h2 in range(2):
                a(f"v_pk_add_f32 v[{r+2*h2}:{r+2*h2+1}], v[{r+2*h2}:{r+2*h2+1}], v[{r+4+2*h2}:{r+4+2*h2+1}]")
                a(f"v_pk_add_f32 v[{r+8+2*h2}:{r+8+2*h2+1}], v[{r+8+2*h2}:{r+8+2*h2+1}], v[{r+12+2*h2}:{r+12+2*h2+1}]")
            for h2 in range(2):
                a(f"v_pk_add_f32 v[{r+2*h2}:{r+2*h2+1}], v[{r+2*h2}:{r+2*h2+1}], v[{r+8+2*h2}:{r+8+2*h2+1}]")
            e = E + k * 16
            for h2 in range(2):
                xr = XD + 4*p + 2*qq + h2; ar = AOT + 2*k + h2
                a(f"v_lshlrev_b32 v{e+0}, 16, v{xr}")
                a(f"v_and_b32 v{e+1}, 0xffff0000, v{xr}")
                a(f"v_lshlrev_b32 v{e+2}, 16, v{ar}")
                a(f"v_and_b32 v{e+3}, 0xffff0000, v{ar}")
                a(f"v_pk_add_f32 v[{e}:{e+1}], v[{e}:{e+1}], v[{e+2}:{e+3}]")
                a(f"v_cvt_pk_bf16_f32 v{e+4}, v{e}, v{e+1}")
                a(f"v_cvt_pk_bf16_f32 v{e+5}, v{r+2*h2}, v{r+2*h2+1}")
                a(f"v_lshlrev_b32 v{e+6}, 16, v{e+4}")
                a(f"v_and_b32 v{e+7}, 0xffff0000, v{e+4}")
                a(f"v_lshlrev_b32 v{e+8}, 16, v{e+5}")
                a(f"v_and_b32 v{e+9}, 0xffff0000, v{e+5}")
                a(f"v_pk_add_f32 v[{e+6}:{e+7}], v[{e+6}:{e+7}], v[{e+8}:{e+9}]")
                a(f"v_cvt_pk_bf16_f32 v{xr}, v{e+6}, v{e+7}")
        a(f"global_store_dwordx4 v{vXo}, v[{XD+4*p}:{XD+4*p+3}], s[{S_OUT}:{S_OUT+1}] offset:{64*p}")
```

```python
from gen import *
import g1, ssm, g2

def build(which):
    if which == "ln":
        return build_multi([("ln_kernel", 256, 81920, ln_role), ("nop_kernel", 256, 0, lambda a: None)])
    if which == "g1":
        return build_multi([("ln_kernel", 256, 81920, ln_role),
                            ("g1_kernel", 256, 81920, lambda a: g1.g1_role(a, "L_exit_g1_kernel"))])
    if which == "ssm":
        return build_multi([("ln_kernel", 256, 81920, ln_role),
                            ("ssm_kernel", 256, 81920, ssm.ssm_role)])
    if which == "m4":
        return build_multi([("ln_kernel", 256, 81920, ln_role),
                            ("ssm_kernel", 256, 81920, ssm.ssm_role),
                            ("g1_kernel", 256, 81920, lambda a: g1.g1_role(a, "L_exit_g1_kernel")),
                            (NAME + "_kernel", 256, 81920, g2.g2_role)])
    raise ValueError(which)
```

```python
from gen import *

KC = 256; KCS = 4416; KCH = 4 * KCS
UB = KC + 2 * KCH; UCH = 4608
RED = UB + 2 * UCH
TABCH = 33792; TABB = 16896; TROW = 528
XCH = 67584
L2E_HI = 0x3fb8aa3b; L2E_LO = 0x32a57060; LN2 = 0x3f317218; INV2PI = 0x3e22f983

def cmul(a, d, x, w):
    a(f"v_pk_mul_f32 v[{d}:{d+1}], v[{x}:{x+1}], v[{w}:{w+1}] op_sel:[0,0] op_sel_hi:[1,0]")
    a(f"v_pk_fma_f32 v[{d}:{d+1}], v[{x}:{x+1}], v[{w}:{w+1}], v[{d}:{d+1}] op_sel:[1,1,0] op_sel_hi:[0,1,1] neg_lo:[1,0,0]")

def exp_bf16(a, x, t1, t2):
    a(f"v_mul_f32 v{t1}, {L2E_HI:#x}, v{x}")
    a(f"v_mov_b32 v{t2}, {L2E_HI:#x}")
    a(f"v_fma_f32 v{t2}, v{x}, v{t2}, -v{t1}")
    a(f"v_fmac_f32 v{t2}, {L2E_LO:#x}, v{x}")
    a(f"v_exp_f32 v{t1}, v{t1}")
    a(f"v_mul_f32 v{t2}, {LN2:#x}, v{t2}")
    a(f"v_fma_f32 v{x}, v{t1}, v{t2}, v{t1}")
    a(f"v_cvt_pk_bf16_f32 v{x}, v{x}, v{x}")
    a(f"v_lshlrev_b32 v{x}, 16, v{x}")

A_ROWS = {}
def _rows():
    lo = list(range(8)) + [256, 258, 260, 262, 264] + [512, 516, 520]
    hi = [768, 772, 776] + [1024, 1032, 1280, 1288, 1536, 1544, 1792, 1800]
    for hh, lst in ((0, lo), (1, hi)):
        for i, kap in enumerate(lst):
            A_ROWS[kap] = 8 * (i // 4) + 4 * hh + i % 4
_rows()

def kgen(a):
    sCH, sMH = 60, 61
    sDT, sD = 62, 63
    a(f"""
    ; ---------------- K-gen
    s_lshr_b32 s{sCH}, s{S_WAVE}, 1
    s_and_b32 s{sMH}, s{S_WAVE}, 1
    s_lshl_b32 s3, s{S_J}, 2
    s_waitcnt lgkmcnt(0)
    s_load_dword s{sDT}, s[{S_LOGDT}:{S_LOGDT+1}], s3
    s_load_dword s{sD}, s[{S_DSK}:{S_DSK+1}], s3
    s_lshl_b32 s4, s{S_J}, 1
    s_add_u32 s4, s4, s{sCH}
    s_lshl_b32 s4, s4, 8
    s_lshl_b32 s5, s{sMH}, 7
    s_add_u32 s4, s4, s5
    v_lshlrev_b32 v3, 1, v1
    v_add_u32 v3, s4, v3
    global_load_ushort v4, v3, s[{S_LOGA}:{S_LOGA+1}]
    global_load_ushort v5, v3, s[{S_AIM}:{S_AIM+1}]
    global_load_ushort v6, v3, s[{S_CRE}:{S_CRE+1}]
    global_load_ushort v7, v3, s[{S_CIM}:{S_CIM+1}]
    s_waitcnt lgkmcnt(0)
    s_lshl_b32 s5, s{sCH}, 4
    s_lshr_b32 s{sDT}, s{sDT}, s5
    s_lshl_b32 s{sDT}, s{sDT}, 16
    s_lshr_b32 s{sD}, s{sD}, s5
    s_lshl_b32 s{sD}, s{sD}, 16
    v_mov_b32 v8, s{sDT}
    """)
    exp_bf16(a, 8, 9, 10)
    a("s_waitcnt vmcnt(0)")
    for r in (4, 5, 6, 7): a(f"v_lshlrev_b32 v{r}, 16, v{r}")
    exp_bf16(a, 4, 9, 10)
    W1, W8, W256, W2, W4, W16 = 16, 18, 20, 22, 24, 26
    C = 12
    a(f"""
    v_mul_f32 v14, v4, v8
    v_mul_f32 v14, {L2E_HI | 0x80000000:#x}, v14       ; -Are*dt*log2e
    v_mul_f32 v15, v5, v8
    v_mul_f32 v15, {INV2PI:#x}, v15
    v_add_f32 v8, v8, v8
    v_mul_f32 v{C}, v6, v8
    v_mul_f32 v{C+1}, v7, v8
    """)
    for (W, p) in ((W1, 1.0), (W8, 8.0), (W256, 256.0)):
        if p == 1.0:
            a(f"v_exp_f32 v9, v14"); a(f"v_cos_f32 v{W}, v15"); a(f"v_sin_f32 v{W+1}, v15")
        else:
            lit = {8.0: "0x41000000", 256.0: "0x43800000"}[p]
            a(f"v_mul_f32 v10, {lit}, v14"); a(f"v_mul_f32 v11, {lit}, v15")
            a(f"v_exp_f32 v9, v10"); a(f"v_cos_f32 v{W}, v11"); a(f"v_sin_f32 v{W+1}, v11")
        a(f"v_mul_f32 v{W}, v{W}, v9"); a(f"v_mul_f32 v{W+1}, v{W+1}, v9")
    cmul(a, W2, W1, W1); cmul(a, W16, W8, W8); cmul(a, W4, W2, W2)
    a(f"""
    s_mul_i32 s4, s{sCH}, {TABCH}
    s_lshl_b32 s5, s{sMH}, 8
    s_add_u32 s4, s4, s5
    v_lshlrev_b32 v3, 2, v1
    v_add_u32 v3, s4, v3
    """)
    pk = [28, 29, 30, 31]; pki = [0]
    def emitA(kap, x):
        t = pk[pki[0] % 4]; pki[0] += 1
        a(f"v_cvt_pk_bf16_f32 v{t}, v{x}, -v{x+1}")
        a(f"ds_write_b32 v3, v{t} offset:{A_ROWS[kap]*TROW}")
    def emitB(j, x):
        t = pk[pki[0] % 4]; pki[0] += 1
        a(f"v_cvt_pk_bf16_f32 v{t}, v{x}, v{x+1}")
        a(f"ds_write_b32 v3, v{t} offset:{TABB + j*TROW}")
    E = [32, 34, 36, 38]
    a(f"v_mov_b32 v{E[0]}, 1.0"); a(f"v_mov_b32 v{E[0]+1}, 0")
    emitB(0, E[0]); emitB(1, W8)
    prev = {0: E[0], 1: W8}
    cc = [40, 42]
    coarse = []
    regs = {}
    def mk(kap, src, w):
        coarse.append((kap, src, w))
    R = {0: C}
    pool = iter(range(44, 100, 2))
    plan = [(1, 0, W1), (256, 0, W256), (2, 1, W1), (512, 256, W256), (3, 2, W1), (258, 256, W2), (4, 3, W1), (768, 512, W256),
            (5, 4, W1), (260, 256, W4), (6, 5, W1), (1024, 768, W256), (7, 6, W1), (262, 258, W4), (264, 256, W8), (1280, 1024, W256),
            (516, 512, W4), (520, 512, W8), (1536, 1280, W256), (772, 768, W4), (776, 768, W8), (1792, 1536, W256),
            (1032, 1024, W8), (1288, 1280, W8), (1544, 1536, W8), (1800, 1792, W8)]
    emitA(0, C)
    j = 2; pi = 0
    while j < 32 or pi < len(plan):
        if j < 32:
            d = E[(j % 2) + 2 * ((j // 2) % 2)]
            cmul(a, d, prev[j % 2], W16);
            pend = (j, d); prev[j % 2] = d; j += 1
        else: pend = None
        outs = []
        for _ in range(1 if j < 32 else 4):
            if pi < len(plan):
                kap, src, w = plan[pi]; pi += 1
                d2 = next(pool); R[kap] = d2
                cmul(a, d2, R[src], w); outs.append((kap, d2))
        if pend: emitB(*pend)
        for kap, d2 in outs: emitA(kap, d2)
    D = 32
    a(f"""
    v_and_b32 v4, 31, v1
    v_mul_u32_u24 v4, {TROW}, v4
    v_lshrrev_b32 v5, 5, v1
    v_lshlrev_b32 v5, 4, v5
    v_add3_u32 v4, v4, v5, s4
    s_waitcnt lgkmcnt(0)
    """)
    FA, FB = 64, 96
    for tt in range(8):
        a(f"ds_read_b128 v[{FA+4*tt}:{FA+4*tt+3}], v4 offset:{tt*32}")
        a(f"ds_read_b128 v[{FB+4*tt}:{FB+4*tt+3}], v4 offset:{TABB + tt*32}")
    for tt in range(8):
        a(f"s_waitcnt lgkmcnt({min(15, 2*(7-tt))})")
        c = "0" if tt == 0 else f"v[{D}:{D+15}]"
        a(f"v_mfma_f32_32x32x16_bf16 v[{D}:{D+15}], v[{FA+4*tt}:{FA+4*tt+3}], v[{FB+4*tt}:{FB+4*tt+3}], {c}")
    a(f"""
    s_lshl_b32 s4, s{sCH}, 12
    s_add_u32 s4, s4, {XCH}
    v_lshlrev_b32 v3, 4, v1
    v_add_u32 v3, s4, v3
    s_cmp_eq_u32 s{sMH}, 0
    s_cbranch_scc1 L_kg_a
    """)
    for g in range(4):
        a(f"ds_write_b128 v3, v[{D+4*g}:{D+4*g+3}] offset:{g*1024}")
    a("s_waitcnt lgkmcnt(0)")
    a.label("L_kg_a")
    a("s_barrier")
    a(f"s_cmp_eq_u32 s{sMH}, 0")
    a("s_cbranch_scc0 L_kg_b")
    for g in range(4):
        a(f"ds_read_b128 v[{64+4*g}:{64+4*g+3}], v3 offset:{g*1024}")
    a("s_waitcnt lgkmcnt(0)")
    for i in range(0, 16, 2):
        a(f"v_pk_add_f32 v[{D+i}:{D+i+1}], v[{D+i}:{D+i+1}], v[{64+i}:{64+i+1}]")
    a(f"""
    s_mul_i32 s4, s{sCH}, {KCH}
    s_add_u32 s4, s4, {KC + 4112 - 512*7}
    v_and_b32 v4, 31, v1
    v_lshlrev_b32 v4, 4, v4
    v_sub_u32 v4, s4, v4
    v_and_b32 v5, 1, v1
    v_cmp_eq_u32 vcc, 1, v5
    """)
    def blk(b, vals, P):
        for k, (lo, hi) in enumerate(vals):
            a(f"v_cvt_pk_bf16_f32 v{P+k}, v{lo}, v{hi}")
        a(f"ds_write_b128 v4, v[{P}:{P+3}] offset:{512*(7-b)}")
    d = lambda i: D + i
    for bb in range(4):
        a(f"v_cndmask_b32 v{80+bb}, v{d(3+2*bb)}, v{d(4+2*bb)}, vcc")
    a("s_mov_b32 exec_lo, -1")
    a("s_mov_b32 exec_hi, 0")
    blk(0, [(d(7), d(6)), (d(5), d(4)), (d(3), d(2)), (d(1), d(0))], 64)
    blk(1, [(d(12), d(11)), (d(10), d(10)), (d(10), d(9)), (d(8), d(8))], 68)
    blk(2, [(d(15), d(15)), (d(14), d(14)), (d(14), d(13)), (d(13), d(13))], 72)
    a("s_mov_b32 exec_lo, 0")
    a("s_mov_b32 exec_hi, -1")
    blk(3, [(d(2), d(2)), (d(1), d(1)), (d(1), d(0)), (d(0), d(0))], 64 + 20)
    for bb in range(4):
        L, H = d(3 + 2 * bb), d(4 + 2 * bb)
        blk(4 + bb, [(H, H), (H, 80 + bb), (L, L), (L, L)], 88 + 4 * bb)
    a("s_mov_b64 exec, -1")
    a(f"""
    v_mov_b32 v64, 0
    v_mov_b32 v65, 0
    v_mov_b32 v66, 0
    v_mov_b32 v67, 0
    s_mul_i32 s4, s{sCH}, {KCH}
    s_add_u32 s4, s4, {KC}
    v_lshlrev_b32 v4, 4, v1
    v_add_u32 v5, 4096, v4
    v_cmp_gt_u32 vcc, 2, v1
    v_cndmask_b32 v4, v5, v4, vcc
    v_add_u32 v4, s4, v4
    s_mov_b64 exec, 0xfffff
    ds_write_b128 v4, v[64:67]
    s_mov_b64 exec, -1
    s_waitcnt lgkmcnt(0)
    """)
    a.label("L_kg_b")
    a("s_barrier")
    a(f"""
    s_mul_i32 s4, s{sCH}, {KCH}
    s_lshl_b32 s5, s{sMH}, 10
    s_add_u32 s4, s4, s5
    s_add_u32 s4, s4, {KC}
    v_lshlrev_b32 v4, 4, v1
    v_add_u32 v4, s4, v4
    """)
    for ps in range(3):
        Wd = 64 + 24 * ps
        if ps == 2:
            a(f"s_cmp_eq_u32 s{sMH}, 0")
            a("s_cbranch_scc0 L_kg_c")
            a("s_mov_b64 exec, 0xfffff")
        a(f"ds_read_b128 v[{Wd}:{Wd+3}], v4 offset:{ps*2048}")
        a(f"ds_read_b128 v[{Wd+4}:{Wd+7}], v4 offset:{ps*2048+16}")
        a("s_waitcnt lgkmcnt(0)")
        for k in range(4):
            a(f"v_alignbit_b32 v{Wd+8+k}, v{Wd+k+1}, v{Wd+k}, 16")
            a(f"v_mov_b32 v{Wd+12+k}, v{Wd+k+1}")
            a(f"v_alignbit_b32 v{Wd+16+k}, v{Wd+k+2}, v{Wd+k+1}, 16")
        for c in range(3):
            a(f"ds_write_b128 v4, v[{Wd+8+4*c}:{Wd+8+4*c+3}] offset:{ps*2048 + (c+1)*KCS}")
        if ps == 2:
            a("s_mov_b64 exec, -1")
            a.label("L_kg_c")

def load_u(a):
    sX = 64
    a("s_waitcnt lgkmcnt(0)")
    ws_base(a, sX, WS_XNB)
    a(f"""
    v_lshrrev_b32 v8, 1, v0
    v_lshlrev_b32 v8, 13, v8
    v_and_b32 v9, 1, v0
    v_lshlrev_b32 v10, 4, v9
    s_lshl_b32 s4, s{S_J}, 5
    v_add3_u32 v8, v8, v10, s4
    v_add_u32 v10, 0x100000, v8
    global_load_dwordx4 v[200:203], v8, s[{sX}:{sX+1}] sc1
    global_load_dwordx4 v[204:207], v10, s[{sX}:{sX+1}] sc1
    """)

def store_u(a):
    a(f"""
    v_lshrrev_b32 v8, 1, v0
    v_lshlrev_b32 v8, 4, v8
    v_and_b32 v9, 1, v0
    v_mul_u32_u24 v9, {UCH}, v9
    v_add_u32 v8, v8, v9
    v_add_u32 v8, {UB + 512}, v8
    s_waitcnt vmcnt(0)
    ds_write_b128 v8, v[200:203]
    ds_write_b128 v8, v[204:207] offset:2048
    v_mov_b32 v200, 0
    v_mov_b32 v201, 0
    v_mov_b32 v202, 0
    v_mov_b32 v203, 0
    v_lshrrev_b32 v9, 5, v0
    v_mul_u32_u24 v9, {UCH}, v9
    v_and_b32 v10, 31, v0
    v_lshl_add_u32 v9, v10, 4, v9
    v_add_u32 v9, {UB}, v9
    s_cmp_eq_u32 s{S_WAVE}, 0
    s_cbranch_scc0 L_su_a
    ds_write_b128 v9, v[200:203]
    """)
    a.label("L_su_a")

def conv(a):
    sCH, sPAR = 60, 61; sD = 63
    sAO = 66
    vF, vG, vF0, vG0 = 4, 5, 6, 7
    ACC = 8
    FS = [40, 104]; GS = [72, 136]
    a(f"""
    ; ---------------- conv
    v_and_b32 v168, 15, v1            ; m / n
    v_lshrrev_b32 v169, 4, v1         ; q
    v_and_b32 v170, 3, v168
    v_sub_u32 v170, 3, v170
    v_mul_u32_u24 v170, {KCS}, v170
    v_lshrrev_b32 v171, 2, v168
    v_lshlrev_b32 v171, 3, v171
    v_sub_u32 v170, v170, v171
    v_lshl_add_u32 v170, v169, 4, v170
    s_mul_i32 s4, s{sCH}, {KCH}
    s_add_u32 s4, s4, {KC + 4120 - 4096}
    v_add_u32 v{vF0}, s4, v170
    s_lshl_b32 s5, s{sPAR}, 6
    v_subrev_u32 v{vF}, s5, v{vF0}
    v_lshlrev_b32 v170, 5, v168
    v_lshl_add_u32 v170, v169, 4, v170
    s_mul_i32 s4, s{sCH}, {UCH}
    s_add_u32 s4, s4, {UB}
    v_add_u32 v{vG0}, s4, v170
    v_subrev_u32 v{vG}, s5, v{vG0}
    """)
    def loads(k):
        F = FS[k % 2]; Gr = GS[k % 2]
        for i in range(8):
            off = 64 * (64 - 1 - 2 * k - 8 * i)
            aa = i
            a(f"ds_read_b128 v[{Gr+4*aa}:{Gr+4*aa+3}], v{vG} offset:{512*(aa+1) - 64 - 128*k}")
            a(f"ds_read_b64 v[{F+4*i}:{F+4*i+1}], v{vF} offset:{off}")
            a(f"ds_read_b64 v[{F+4*i+2}:{F+4*i+3}], v{vF} offset:{off+8}")
    def mm(k):
        F = FS[k % 2]; Gr = GS[k % 2]
        for i in range(8):
            for aa in range(8 - i):
                t = i + aa; d = ACC + 4 * t
                c = "0" if (k == 0 and i == 0) else f"v[{d}:{d+3}]"
                a(f"v_mfma_f32_16x16x32_bf16 v[{d}:{d+3}], v[{F+4*i}:{F+4*i+3}], v[{Gr+4*aa}:{Gr+4*aa+3}], {c}")
    loads(0)
    for k in range(4):
        a("s_waitcnt lgkmcnt(0)")
        if k < 3: loads(k + 1)
        else:
            a(f"ds_read_b64 v[{FS[0]}:{FS[0]+1}], v{vF0} offset:4096")
            a(f"ds_read_b64 v[{FS[0]+2}:{FS[0]+3}], v{vF0} offset:{4096+8}")
            a(f"s_lshl_b32 s5, s{sPAR}, 11")
            a(f"v_add_u32 v{vG}, s5, v{vG0}")
            for tt in range(4):
                a(f"ds_read_b128 v[{GS[0]+4*tt}:{GS[0]+4*tt+3}], v{vG} offset:{512*(tt+1)}")
        mm(k)
    a("s_waitcnt lgkmcnt(0)")
    a(f"s_cmp_eq_u32 s{sPAR}, 0")
    a("s_cbranch_scc0 L_cv_p1")
    def finish(par, lab):
        for tt in range(4):
            d = ACC + 4 * (4 * par + tt)
            a(f"v_mfma_f32_16x16x32_bf16 v[{d}:{d+3}], v[{FS[0]}:{FS[0]+3}], v[{GS[0]+4*tt}:{GS[0]+4*tt+3}], v[{d}:{d+3}]")
        a(f"""
        s_lshl_b32 s4, s{S_WAVE}, 12
        s_add_u32 s4, s4, {RED}
        v_lshlrev_b32 v170, 4, v1
        v_add_u32 v171, s4, v170
        s_xor_b32 s4, s{S_WAVE}, 1
        s_lshl_b32 s4, s4, 12
        s_add_u32 s4, s4, {RED}
        v_add_u32 v170, s4, v170
        """)
        for tt in range(4):
            d = ACC + 4 * (4 * (1 - par) + tt)
            a(f"ds_write_b128 v171, v[{d}:{d+3}] offset:{tt*1024}")
        a(f"""
        v_lshlrev_b32 v172, 5, v168
        v_lshl_add_u32 v172, v169, 3, v172
        s_mul_i32 s4, s{sCH}, {UCH}
        s_add_u32 s4, s4, {UB + 512 + par*2048}
        v_add_u32 v173, s4, v172
        """)
        for tt in range(4):
            a(f"ds_read_b64 v[{72+2*tt}:{72+2*tt+1}], v173 offset:{tt*512}")
        a("s_waitcnt lgkmcnt(0)")
        a("s_barrier")
        for tt in range(4):
            a(f"ds_read_b128 v[{40+4*tt}:{40+4*tt+3}], v170 offset:{tt*1024}")
        ws_base(a, sAO, WS_AO)
        a(f"""
        s_lshl_b32 s4, s{S_J}, 1
        s_add_u32 s4, s4, s{sCH}
        s_lshl_b32 s4, s4, 12
        s_add_u32 s4, s4, {par*2048}
        v_add_u32 v172, s4, v172
        s_waitcnt lgkmcnt(0)
        """)
        for tt in range(4):
            d = ACC + 4 * (4 * par + tt); p = 40 + 4 * tt; u = 72 + 2 * tt; T = 80 + 8 * tt
            a(f"v_pk_add_f32 v[{d}:{d+1}], v[{d}:{d+1}], v[{p}:{p+1}]")
            a(f"v_pk_add_f32 v[{d+2}:{d+3}], v[{d+2}:{d+3}], v[{p+2}:{p+3}]")
            a(f"v_cvt_pk_bf16_f32 v{p}, v{d}, v{d+1}")
            a(f"v_cvt_pk_bf16_f32 v{p+1}, v{d+2}, v{d+3}")
            for h2 in range(2):
                a(f"v_lshlrev_b32 v{d+2*h2}, 16, v{p+h2}")
                a(f"v_and_b32 v{d+2*h2+1}, 0xffff0000, v{p+h2}")
                a(f"v_lshlrev_b32 v{T+2*h2}, 16, v{u+h2}")
                a(f"v_and_b32 v{T+2*h2+1}, 0xffff0000, v{u+h2}")
            for e in range(4):
                a(f"v_mul_f32 v{T+e}, s{sD}, v{T+e}")
            a(f"v_cvt_pk_bf16_f32 v{p}, v{T}, v{T+1}")
            a(f"v_cvt_pk_bf16_f32 v{p+1}, v{T+2}, v{T+3}")
            for h2 in range(2):
                a(f"v_lshlrev_b32 v{T+2*h2}, 16, v{p+h2}")
                a(f"v_and_b32 v{T+2*h2+1}, 0xffff0000, v{p+h2}")
            a(f"v_pk_add_f32 v[{d}:{d+1}], v[{d}:{d+1}], v[{T}:{T+1}]")
            a(f"v_pk_add_f32 v[{d+2}:{d+3}], v[{d+2}:{d+3}], v[{T+2}:{T+3}]")
            a(f"v_cvt_pk_bf16_f32 v{p+2}, v{d}, v{d+1}")
            a(f"v_cvt_pk_bf16_f32 v{p+3}, v{d+2}, v{d+3}")
            a(f"global_store_dwordx2 v172, v[{p+2}:{p+3}], s[{sAO}:{sAO+1}] offset:{tt*512} sc1")
    finish(0, "a")
    a("s_branch L_cv_end")
    a.label("L_cv_p1")
    finish(1, "b")
    a.label("L_cv_end")

def ssm_role(a, fused=False):
    load_u(a)
    kgen(a)
    a("s_barrier")
    store_u(a)
    a("s_waitcnt lgkmcnt(0)")
    a("s_barrier")
    conv(a)
```

```python
import sys, os
sys.path.insert(0, os.path.dirname(__file__))
from asmlib import *

NAME = "parallel_sum__ssm_conv_s4d__glu_gated_bilinear__prompt"
WS_EPOCH = 0x0
WS_FLN   = 0x1000
WS_FH    = 0x2000
WS_FY    = 0x3000
WS_STATS = 0x8000
WS_XNB   = 0x10000
WS_H     = 0x400000
WS_AO    = 0xA00000
S_X, S_LOGA, S_AIM, S_CRE, S_CIM, S_LOGDT, S_DSK, S_BX = 16, 18, 20, 22, 24, 26, 28, 30
S_WG, S_WU, S_WD, S_OUT, S_DBG, S_WS = 32, 34, 36, 38, 40, 42
S_ONES = 44
S_WAVE = 45
S_J = 46

def prologue(a):
    a(f"""
    s_load_dwordx16 s[16:31], s[0:1], 0
    s_load_dwordx8 s[32:39], s[0:1], 64
    s_load_dwordx4 s[40:43], s[0:1], 96
    s_mov_b32 s{S_ONES}, 0x3f803f80
    v_lshrrev_b32 v2, 6, v0
    v_and_b32 v1, 63, v0
    v_readfirstlane_b32 s{S_WAVE}, v2
    """)

def ws_base(a, dst, off):
    a(f"s_add_u32 s{dst}, s{S_WS}, {off:#x}")
    a(f"s_addc_u32 s{dst+1}, s{S_WS+1}, 0")

def wave_allreduce(a, regs, tmp):
    for pat in ("quad_perm:[1,0,3,2]", "quad_perm:[2,3,0,1]", "row_half_mirror", "row_mirror"):
        for r in regs:
            a(f"v_add_f32_dpp v{r}, v{r}, v{r} {pat} row_mask:0xf bank_mask:0xf")
    for sw in ("v_permlane16_swap_b32", "v_permlane32_swap_b32"):
        for r, t in zip(regs, tmp): a(f"v_mov_b32 v{t}, v{r}")
        for r, t in zip(regs, tmp): a(f"{sw} v{r}, v{t}")
        for r, t in zip(regs, tmp): a(f"v_add_f32 v{r}, v{r}, v{t}")

def ln_role(a, fused=False):
    X0, X1 = 4, 8
    SUM = [12, 13, 14, 15]; TMP = [16, 17, 18, 19]
    F0, F1 = 20, 28
    a(f"""
    s_lshl_b32 s3, s{S_J}, 3
    s_lshl_b32 s4, s{S_WAVE}, 1
    s_add_u32 s3, s3, s4              ; row0
    s_lshl_b32 s4, s3, 10
    v_lshlrev_b32 v3, 4, v1
    v_add_u32 v3, s4, v3
    s_waitcnt lgkmcnt(0)
    global_load_dwordx4 v[{X0}:{X0+3}], v3, s[{S_X}:{S_X+1}]
    global_load_dwordx4 v[{X1}:{X1+3}], v3, s[{S_X}:{S_X+1}] offset:1024
    """)
    a("s_waitcnt vmcnt(0)")
    for k in range(4):
        for (X, sm) in ((X0, 12), (X1, 14)):
            c = "0" if k == 0 else f"v{sm}"
            a(f"v_dot2_f32_bf16 v{sm}, v{X+k}, s{S_ONES}, {c}")
            c = "0" if k == 0 else f"v{sm+1}"
            a(f"v_dot2_f32_bf16 v{sm+1}, v{X+k}, v{X+k}, {c}")
    for (X, F) in ((X0, F0), (X1, F1)):
        for k in range(4):
            a(f"v_lshlrev_b32 v{F+2*k}, 16, v{X+k}")
            a(f"v_and_b32 v{F+2*k+1}, 0xffff0000, v{X+k}")
    wave_allreduce(a, SUM, TMP)
    M = [36, 37]; RS = [38, 39]
    for r, sm in enumerate((12, 14)):
        a(f"v_mul_f32 v{sm}, 0x3b000000, v{sm}")
        a(f"v_mul_f32 v{sm+1}, 0x3b000000, v{sm+1}")
    for r, sm in enumerate((12, 14)):
        a(f"v_fma_f32 v{sm+1}, -v{sm}, v{sm}, v{sm+1}")
        a(f"v_cvt_pk_bf16_f32 v{M[r]}, v{sm}, v{sm+1}")
    for r, sm in enumerate((12, 14)):
        a(f"v_and_b32 v{sm+1}, 0xffff0000, v{M[r]}")
        a(f"v_lshlrev_b32 v{M[r]}, 16, v{M[r]}")
        a(f"v_add_f32 v{sm+1}, 0x3727c5ac, v{sm+1}")
    for r, sm in enumerate((12, 14)):
        a(f"v_cvt_pk_bf16_f32 v{sm+1}, v{sm+1}, v{sm+1}")
    for r, sm in enumerate((12, 14)):
        a(f"v_lshlrev_b32 v{sm+1}, 16, v{sm+1}")
    for r, sm in enumerate((12, 14)):
        a(f"v_sqrt_f32 v{sm+1}, v{sm+1}")
    for r, sm in enumerate((12, 14)):
        a(f"v_cvt_pk_bf16_f32 v{sm+1}, v{sm+1}, v{sm+1}")
    for r, sm in enumerate((12, 14)):
        a(f"v_lshlrev_b32 v{sm+1}, 16, v{sm+1}")
    for r, sm in enumerate((12, 14)):
        a(f"v_rcp_f32 v{RS[r]}, v{sm+1}")
    for r, (F, X) in enumerate(((F0, X0), (F1, X1))):
        for k in range(8):
            a(f"v_sub_f32 v{F+k}, v{F+k}, v{M[r]}")
        for k in range(4):
            a(f"v_cvt_pk_bf16_f32 v{X+k}, v{F+2*k}, v{F+2*k+1}")
        for k in range(4):
            a(f"v_lshlrev_b32 v{F+2*k}, 16, v{X+k}")
            a(f"v_and_b32 v{F+2*k+1}, 0xffff0000, v{X+k}")
        for k in range(8):
            a(f"v_mul_f32 v{F+k}, v{F+k}, v{RS[r]}")
        for k in range(4):
            a(f"v_cvt_pk_bf16_f32 v{X+k}, v{F+2*k}, v{F+2*k+1}")
    a(f"""
    s_mul_i32 s4, s{S_WAVE}, {2*1088}
    v_lshlrev_b32 v3, 4, v1
    v_add_u32 v3, s4, v3
    ds_write_b128 v3, v[{X0}:{X0+3}]
    ds_write_b128 v3, v[{X1}:{X1+3}] offset:1088
    """)
    ws_base(a, 48, WS_STATS)
    a(f"""
    v_mov_b32 v40, v{M[0]}
    v_mov_b32 v41, v{RS[0]}
    v_mov_b32 v42, v{M[1]}
    v_mov_b32 v43, v{RS[1]}
    s_lshl_b32 s4, s3, 3
    v_mov_b32 v44, s4
    v_cmp_eq_u32 vcc, 0, v1
    s_and_saveexec_b64 s[50:51], vcc
    global_store_dwordx4 v44, v[40:43], s[48:49] sc1
    s_mov_b64 exec, s[50:51]
    s_waitcnt lgkmcnt(0)
    s_barrier
    """)
    a(f"""
    v_bfe_u32 v4, v1, 2, 2            ; r
    v_mul_u32_u24 v4, 1088, v4
    v_lshrrev_b32 v5, 4, v1           ; G
    v_lshlrev_b32 v5, 5, v5           ; 16G*2
    v_and_b32 v6, 3, v1
    v_lshlrev_b32 v6, 3, v6           ; 4c*2
    v_add3_u32 v4, v4, v5, v6
    s_lshl_b32 s4, s{S_WAVE}, 8       ; 128w*2
    v_add_u32 v4, s4, v4
    ds_read_b64_tr_b16 v[8:9], v4
    ds_read_b64_tr_b16 v[10:11], v4 offset:{4*1088}
    ds_read_b64_tr_b16 v[12:13], v4 offset:128
    ds_read_b64_tr_b16 v[14:15], v4 offset:{4*1088+128}
    """)
    ws_base(a, 48, WS_XNB)
    a(f"""
    s_lshl_b32 s4, s{S_J}, 13
    s_lshl_b32 s5, s{S_WAVE}, 11      ; 128w*16
    s_add_u32 s4, s4, s5
    v_lshlrev_b32 v5, 4, v1
    v_add_u32 v5, s4, v5
    s_waitcnt lgkmcnt(2)
    global_store_dwordx4 v5, v[8:11], s[48:49] sc1
    s_waitcnt lgkmcnt(0)
    global_store_dwordx4 v5, v[12:15], s[48:49] offset:1024 sc1
    """)

def kernel_header(a, label):
    a.raw(f".globl {label}")
    a.raw(".p2align 8")
    a.raw(f".type {label},@function")
    a.label(label)

def kernel_desc(label, vgpr=256):
    return f""".p2align 6
.amdhsa_kernel {label}
  .amdhsa_next_free_vgpr {vgpr}
  .amdhsa_next_free_sgpr 102
  .amdhsa_accum_offset {vgpr}
  .amdhsa_group_segment_fixed_size 0
  .amdhsa_kernarg_size 112
  .amdhsa_user_sgpr_count 2
  .amdhsa_user_sgpr_kernarg_segment_ptr 1
  .amdhsa_system_sgpr_workgroup_id_x 1
.end_amdhsa_kernel
"""

def exit_if_ge(a, n, lab):
    a(f"s_cmp_ge_u32 s2, {n}")
    a(f"s_cbranch_scc1 {lab}")

def build_multi(stages):
    a = Asm()
    head = "".join(f"; @launch kernel={lab} grid=({g},1,1) block=(256,1,1) lds={lds}\n" for lab, g, lds, fn in stages)
    a.raw('.amdgcn_target "amdgcn-amd-amdhsa--gfx950"')
    a.raw(".text")
    for lab, g, lds, fn in stages:
        kernel_header(a, lab)
        exit_if_ge(a, g, f"L_exit_{lab}")
        prologue(a)
        a(f"s_mov_b32 s{S_J}, s2")
        fn(a)
        a.label(f"L_exit_{lab}")
        a("s_endpgm")
    body = a.render()
    tail = '.section .rodata,"a"\n' + "".join(kernel_desc(lab) for lab, g, lds, fn in stages)
    return head + body + tail

if __name__ == "__main__":
    import roles
    which = sys.argv[1] if len(sys.argv) > 1 else "multi"
    src = roles.build(which)
    out = sys.argv[2] if len(sys.argv) > 2 else f"cdna_kernels/{NAME}.s"
    open(out, "w").write(src)
    print("wrote", out, len(src), "bytes")
```

```python
from gen import *

S_RB, S_CB = 47, 48
XL = 49152
def g1_map(a):
    a(f"""
    s_and_b32 s3, s{S_J}, 7
    s_lshr_b32 s4, s{S_J}, 3
    s_and_b32 s5, s3, 1
    s_lshl_b32 s5, s5, 3
    s_and_b32 s6, s4, 7
    s_add_u32 s{S_RB}, s5, s6
    s_lshr_b32 s5, s3, 1
    s_lshl_b32 s5, s5, 2
    s_lshr_b32 s6, s4, 3
    s_add_u32 s{S_CB}, s5, s6
    """)

def g1_role(a, skip_label, fused=False):
    SRDX, SRDW = 52, 56
    sWM, sWN = 60, 61
    sXoff, sWoff = 62, 63
    sMX, sMW = 64, 65
    sST = 66
    sH = 68
    vAad = [4, 5, 6]; vBad = [7, 8, 9, 10]; vXo = [11, 12, 13, 14]; vWo = [15, 16, 17]
    vCS = [18, 19, 20]; vST = [22, 24]
    vT = 26
    AF = [32, 44]
    BF = [56, 88]
    ACC = 128
    CSV = 56
    g1_map(a)
    a(f"s_cmp_ge_u32 s{S_CB}, 15")
    a(f"s_cbranch_scc1 {skip_label}")
    a(f"""
    s_and_b32 s{sWM}, s{S_WAVE}, 1
    s_lshr_b32 s{sWN}, s{S_WAVE}, 1
    s_waitcnt lgkmcnt(0)
    s_lshl_b32 s3, s{S_RB}, 17
    s_add_u32 s{SRDX}, s{S_X}, s3
    s_addc_u32 s{SRDX+1}, s{S_X+1}, 0
    s_and_b32 s{SRDX+1}, s{SRDX+1}, 0xffff
    s_mov_b32 s{SRDX+2}, 0x20000
    s_mov_b32 s{SRDX+3}, 0x20000
    s_cmp_eq_u32 s{sWM}, 0
    s_cselect_b32 s{SRDW}, s{S_WG}, s{S_WU}
    s_cselect_b32 s{SRDW+1}, s{S_WG+1}, s{S_WU+1}
    s_mul_i32 s3, s{S_CB}, 192
    s_add_u32 s{SRDW}, s{SRDW}, s3
    s_addc_u32 s{SRDW+1}, s{SRDW+1}, 0
    s_and_b32 s{SRDW+1}, s{SRDW+1}, 0xffff
    s_sub_u32 s{SRDW+2}, {512*2752}, s3
    s_mov_b32 s{SRDW+3}, 0x20000
    """)
    a(f"""
    v_lshrrev_b32 v{vT}, 3, v1             ; r
    v_and_b32 v{vT+1}, 7, v1               ; p
    v_lshrrev_b32 v{vT+2}, 1, v{vT}        ; r>>1
    v_xor_b32 v{vT+3}, v{vT+1}, v{vT+2}    ; p ^ (r>>1)
    v_lshlrev_b32 v{vT+4}, 10, v{vT}       ; r*1024
    """)
    for ii in range(4):
        a(f"v_xor_b32 v{vT+5}, {4*(ii&1)}, v{vT+3}")
        a(f"v_lshlrev_b32 v{vT+5}, 4, v{vT+5}")
        a(f"v_add3_u32 v{vXo[ii]}, v{vT+4}, v{vT+5}, {ii*8192}" if ii == 0 else f"v_add_u32 v{vXo[ii]}, v{vT+4}, v{vT+5}")
        if ii > 0: a(f"v_add_u32 v{vXo[ii]}, {ii*8192}, v{vXo[ii]}")
    a(f"s_lshl_b32 s3, s{sWM}, 1")
    for i in range(3):
        a(f"""
        v_add_u32 v{vT}, {64*i}, v1
        v_mul_u32_u24 v{vT+1}, 0x5556, v{vT}
        v_lshrrev_b32 v{vT+1}, 18, v{vT+1}      ; row = u/12  (u*21846>>18)
        v_mul_u32_u24 v{vT+2}, 12, v{vT+1}
        v_sub_u32 v{vT+2}, v{vT}, v{vT+2}       ; pos
        v_xor_b32 v{vT+2}, s3, v{vT+2}
        v_lshlrev_b32 v{vT+2}, 4, v{vT+2}
        v_mul_u32_u24 v{vT+1}, 2752, v{vT+1}
        v_add_u32 v{vWo[i]}, v{vT+1}, v{vT+2}
        """)
    a(f"""
    s_lshl_b32 s{sXoff}, s{S_WAVE}, 15          ; w*4*8192
    s_mul_i32 s{sWoff}, s{sWN}, {16*2752}       ; ks = w>>1
    s_lshl_b32 s{sMX}, s{S_WAVE}, 12            ; w*4*1024
    s_add_u32 s{sMX}, s{sMX}, {XL}
    s_mul_i32 s{sMW}, s{sWN}, 6144
    s_mul_i32 s3, s{sWM}, 3072
    s_add_u32 s{sMW}, s{sMW}, s3
    """)
    issued = []
    NODMA = os.environ.get("G1_NODMA"); NODOT = os.environ.get("G1_NODOT"); ILV = os.environ.get("G1_ILV")
    NOREAD = os.environ.get("G1_NOREAD")
    def issue_list(stage):
        st = stage + 3; L = []
        if NODMA and stage >= 0: return L
        if st < 16:
            for i in range(3):
                t = f"s_add_u32 m0, s{sMW}, {(st % 4) * 12288 + i * 1024}\nbuffer_load_dwordx4 v{vWo[i]}, s[{SRDW}:{SRDW+3}], s{sWoff} offen lds"
                if i == 2: t += f"\ns_add_u32 s{sWoff}, s{sWoff}, {32*2752}"
                L.append(t)
        if stage % 2 != 0 and st // 2 < 8:
            c = st // 2
            for ii in range(4):
                t = f"s_add_u32 m0, s{sMX}, {(c % 2) * 16384 + ii * 1024}\nbuffer_load_dwordx4 v{vXo[ii]}, s[{SRDX}:{SRDX+3}], s{sXoff} offen lds"
                if ii == 3: t += f"\ns_add_u32 s{sXoff}, s{sXoff}, 128"
                L.append(t)
        return L
    def issue(stage):
        for t in issue_list(stage):
            a(t); issued.append(stage)
    pend = []
    def pop_pend():
        if pend:
            t, st = pend.pop(0); a(t); issued.append(st)
    issue(-3); issue(-2); issue(-1)
    a(f"""
    v_bfe_u32 v{vT}, v1, 4, 1              ; mat
    v_lshrrev_b32 v{vT+1}, 5, v1           ; hh
    v_bfe_u32 v{vT+2}, v1, 2, 2            ; r
    v_lshl_add_u32 v{vT+2}, v{vT+1}, 3, v{vT+2}   ; 8hh + r
    v_mul_u32_u24 v{vT+2}, 192, v{vT+2}
    v_mul_u32_u24 v{vT+3}, 3072, v{vT}
    v_add_u32 v{vT+2}, v{vT+2}, v{vT+3}
    v_bfe_u32 v{vT+3}, v1, 1, 1            ; c>>1
    v_lshlrev_b32 v{vT+3}, 4, v{vT+3}
    v_and_b32 v{vT+4}, 1, v1
    v_lshlrev_b32 v{vT+4}, 3, v{vT+4}
    v_add3_u32 v{vT+2}, v{vT+2}, v{vT+3}, v{vT+4}
    s_mul_i32 s3, s{sWM}, 3
    """)
    for j in range(3):
        a(f"""
        s_add_u32 s4, s3, {j}
        v_xor_b32 v{vT+3}, s4, v{vT}
        v_lshl_add_u32 v{vAad[j]}, v{vT+3}, 5, v{vT+2}
        """)
    a(f"""
    v_and_b32 v{vT}, 31, v1
    v_bfe_u32 v{vT+2}, v{vT}, 1, 3
    s_lshl_b32 s3, s{sWN}, 13
    s_add_u32 s3, s3, {XL}
    v_lshlrev_b32 v{vT+3}, 7, v{vT}
    v_add_u32 v{vT+3}, s3, v{vT+3}
    """)
    for ks in range(4):
        a(f"""
        v_add_u32 v{vT+4}, {2*ks}, v{vT+1}
        v_xor_b32 v{vT+4}, v{vT+4}, v{vT+2}
        v_lshl_add_u32 v{vBad[ks]}, v{vT+4}, 4, v{vT+3}
        """)
    ws_base(a, sST, WS_STATS)
    a(f"""
    s_lshl_b32 s3, s{S_RB}, 7
    s_lshl_b32 s4, s{sWN}, 6
    s_add_u32 s3, s3, s4
    v_add_u32 v{vT+4}, s3, v{vT}
    v_lshlrev_b32 v{vT+4}, 3, v{vT+4}
    """)
    def stats_load():
        a(f"global_load_dwordx2 v[{vST[0]}:{vST[0]+1}], v{vT+4}, s[{sST}:{sST+1}] sc1")
        a(f"global_load_dwordx2 v[{vST[1]}:{vST[1]+1}], v{vT+4}, s[{sST}:{sST+1}] offset:256 sc1")
        issued.append(99); issued.append(99)
    def acc(j, jn): return ACC + (j * 2 + jn) * 16
    def mfmas(t):
        A = AF[t % 2]; B = BF[(t // 4) % 2] + (t % 4) * 8
        for j in range(3):
            for jn in range(2):
                d = acc(j, jn)
                c = "0" if t == 0 else f"v[{d}:{d+15}]"
                a(f"v_mfma_f32_32x32x16_bf16 v[{d}:{d+15}], v[{A+4*j}:{A+4*j+3}], v[{B+4*jn}:{B+4*jn+3}], {c}")
                if jn == 0 or len(pend) > 2: pop_pend()
            if NODOT and t > 0: continue
            for k in range(2 * 0, 4):
                c = "0" if (t == 0 and k == 0) else f"v{vCS[j]}"
                a(f"v_dot2_f32_bf16 v{vCS[j]}, v{A+4*j+k}, s{S_ONES}, {c}")
    def reads(t):
        if NOREAD and t > 4: return
        st = t // 2; A = AF[t % 2]
        if t % 4 == 0:
            c = t // 4; Bb = BF[c % 2]
            for jn in range(2):
                a(f"ds_read_b128 v[{Bb+4*jn}:{Bb+4*jn+3}], v{vBad[0]} offset:{(c%2)*16384 + jn*4096}")
        base = (st % 4) * 12288 + (t % 2) * 6144
        for j in range(3):
            a(f"ds_read_b64_tr_b16 v[{A+4*j}:{A+4*j+1}], v{vAad[j]} offset:{base}")
            a(f"ds_read_b64_tr_b16 v[{A+4*j+2}:{A+4*j+3}], v{vAad[j]} offset:{base+768}")
        if t % 4 == 0:
            for ks in range(1, 4):
                for jn in range(2):
                    a(f"ds_read_b128 v[{Bb+8*ks+4*jn}:{Bb+8*ks+4*jn+3}], v{vBad[ks]} offset:{(c%2)*16384 + jn*4096}")
    for t in range(32):
        if t % 2 == 0:
            st = t // 2
            allowed = sum(1 for x in issued if x >= st - 2)
            a(f"s_waitcnt vmcnt({allowed}) lgkmcnt(0)")
            a("s_barrier")
            if t in (0, 8, 16, 24): stamp(a, f"t{t}")
            if ILV and st > 0:
                assert not pend
                pend.extend([(x, st) for x in issue_list(st)])
            else: issue(st)
            if st == 12: stats_load()
        else:
            a("s_waitcnt lgkmcnt(0)")
        reads(t)
        if t > 0: mfmas(t - 1)
    a("s_waitcnt lgkmcnt(0)")
    mfmas(31)
    stamp(a, "loopend")
    for j in range(3):
        a(f"v_mov_b32 v{vT+j}, v{vCS[j]}")
    for j in range(3):
        a(f"v_permlane32_swap_b32 v{vCS[j]}, v{vT+j}")
    for j in range(3):
        a(f"v_add_f32 v{vCS[j]}, v{vCS[j]}, v{vT+j}")
    a(f"""
    s_lshl_b32 s3, s{S_WAVE}, 9
    v_and_b32 v{vT}, 31, v1
    v_lshlrev_b32 v{vT}, 2, v{vT}
    v_add_u32 v{vT}, s3, v{vT}
    v_lshrrev_b32 v{vT+1}, 5, v1
    v_lshlrev_b32 v{vT+1}, 4, v{vT+1}
    v_add_u32 v{vT+1}, s3, v{vT+1}
    """)
    for j in range(3):
        a(f"ds_write_b32 v{vT}, v{vCS[j]} offset:{j*128}")
    a("s_waitcnt lgkmcnt(0)")
    for j in range(3):
        for g in range(4):
            a(f"ds_read_b128 v[{CSV+j*16+4*g}:{CSV+j*16+4*g+3}], v{vT+1} offset:{j*128+g*32}")
    ws_base(a, sH, WS_H)
    a(f"""
    s_lshl_b32 s3, s{S_RB}, 2
    s_lshl_b32 s4, s{sWN}, 1
    s_add_u32 s3, s3, s4
    s_mul_i32 s3, s3, 86
    s_mul_i32 s4, s{S_CB}, 6
    s_add_u32 s3, s3, s4
    s_mul_i32 s5, s{sWM}, 3
    s_add_u32 s4, s4, s5          ; ft0
    s_add_u32 s3, s3, s5
    s_lshl_b32 s3, s3, 10
    v_lshlrev_b32 v{vT+2}, 4, v1
    v_add_u32 v{vT+2}, s3, v{vT+2}
    s_waitcnt vmcnt(0) lgkmcnt(0)
    """)
    stamp(a, "ep1")
    for jn in range(2):
        a(f"v_mul_f32 v{vT+3+jn}, v{vST[jn]+1}, v{vST[jn]+1}")
    for j in range(3):
        a(f"s_add_u32 s5, s4, {j}")
        a(f"s_cmp_ge_u32 s5, 86")
        a(f"s_cbranch_scc1 L_g1_skip{j}")
        for jn in range(2):
            d = acc(j, jn); cs = CSV + j * 16; st = vST[jn]
            for i in range(0, 16, 2):
                a(f"v_pk_fma_f32 v[{d+i}:{d+i+1}], v[{cs+i}:{cs+i+1}], v[{st}:{st+1}], v[{d+i}:{d+i+1}] op_sel_hi:[1,0,1] neg_lo:[0,1,0] neg_hi:[0,1,0]")
            for i in range(0, 8, 2):
                a(f"v_pk_mul_f32 v[{d+i}:{d+i+1}], v[{d+i}:{d+i+1}], v[{d+i+8}:{d+i+9}]")
            r2 = vT + 3 + jn
            for i in range(0, 8):
                a(f"v_mul_f32 v{d+i}, v{d+i}, v{r2}")
            for i in range(4):
                a(f"v_cvt_pk_bf16_f32 v{d+8+i}, v{d+2*i}, v{d+2*i+1}")
            off = jn * 86 * 1024 + j * 1024
            a(f"v_add_u32 v{vT+5}, {off}, v{vT+2}")
            a(f"global_store_dwordx4 v{vT+5}, v[{d+8}:{d+11}], s[{sH}:{sH+1}] sc1")
        a.label(f"L_g1_skip{j}")
```

```python
import sys, os
sys.path.insert(0, os.path.dirname(__file__))
from asmlib import *

NAME = "parallel_sum__ssm_conv_s4d__glu_gated_bilinear__prompt"
WS_EPOCH = 0x0
WS_FLN   = 0x1000
WS_FH    = 0x2000
WS_FY    = 0x3000
WS_STATS = 0x8000
WS_XNB   = 0x10000
WS_H     = 0x400000
WS_AO    = 0xA00000
S_X, S_LOGA, S_AIM, S_CRE, S_CIM, S_LOGDT, S_DSK, S_BX = 16, 18, 20, 22, 24, 26, 28, 30
S_WG, S_WU, S_WD, S_OUT, S_DBG, S_WS = 32, 34, 36, 38, 40, 42
S_ONES = 44
S_WAVE = 45
S_J = 46

def prologue(a):
    a(f"""
    s_load_dwordx16 s[16:31], s[0:1], 0
    s_load_dwordx8 s[32:39], s[0:1], 64
    s_load_dwordx4 s[40:43], s[0:1], 96
    s_mov_b32 s{S_ONES}, 0x3f803f80
    v_lshrrev_b32 v2, 6, v0
    v_and_b32 v1, 63, v0
    v_readfirstlane_b32 s{S_WAVE}, v2
    """)

WS_STAMP = 0x8000000
STAMPS = False
class Stamper:
    def __init__(self): self.n = 0; self.names = []
ST = Stamper()
def stamp(a, name=""):
    if not STAMPS: return
    if ST.n >= 15: raise ValueError("too many stamps")
    op = "s_memrealtime" if name.startswith("RT") else "s_memtime"
    a(f"{op} s[{70+2*ST.n}:{71+2*ST.n}]")
    ST.names.append(name); ST.n += 1
def dump_stamps(a, launch_idx):
    if not STAMPS: return
    n = ST.n
    a("s_waitcnt lgkmcnt(0) vmcnt(0)")
    for i in range(2 * n):
        a(f"v_writelane_b32 v2, s{70+i}, {i}")
    a(f"s_add_u32 s48, s{S_WS}, {WS_STAMP + launch_idx * 0x100000:#x}")
    a(f"s_addc_u32 s49, s{S_WS+1}, 0")
    a(f"s_lshl_b32 s3, s2, 2")
    a(f"s_add_u32 s3, s3, s{S_WAVE}")
    a(f"s_lshl_b32 s3, s3, 7")
    a(f"v_lshlrev_b32 v3, 2, v1")
    a(f"v_add_u32 v3, s3, v3")
    a(f"s_mov_b64 exec, 0xffffffff")
    a(f"global_store_dword v3, v2, s[48:49]")
    a(f"s_mov_b64 exec, -1")
    print("stamps launch", launch_idx, ST.names)
    ST.n = 0; ST.names = []

def ws_base(a, dst, off):
    a(f"s_add_u32 s{dst}, s{S_WS}, {off:#x}")
    a(f"s_addc_u32 s{dst+1}, s{S_WS+1}, 0")

def wave_allreduce(a, regs, tmp):
    for pat in ("quad_perm:[1,0,3,2]", "quad_perm:[2,3,0,1]", "row_half_mirror", "row_mirror"):
        for r in regs:
            a(f"v_add_f32_dpp v{r}, v{r}, v{r} {pat} row_mask:0xf bank_mask:0xf")
    for sw in ("v_permlane16_swap_b32", "v_permlane32_swap_b32"):
        for r, t in zip(regs, tmp): a(f"v_mov_b32 v{t}, v{r}")
        for r, t in zip(regs, tmp): a(f"{sw} v{r}, v{t}")
        for r, t in zip(regs, tmp): a(f"v_add_f32 v{r}, v{r}, v{t}")

def ln_role(a, fused=False):
    X0, X1 = 4, 8
    SUM = [12, 13, 14, 15]; TMP = [16, 17, 18, 19]
    F0, F1 = 20, 28
    a(f"""
    s_lshl_b32 s3, s{S_J}, 3
    s_lshl_b32 s4, s{S_WAVE}, 1
    s_add_u32 s3, s3, s4              ; row0
    s_lshl_b32 s4, s3, 10
    v_lshlrev_b32 v3, 4, v1
    v_add_u32 v3, s4, v3
    s_waitcnt lgkmcnt(0)
    global_load_dwordx4 v[{X0}:{X0+3}], v3, s[{S_X}:{S_X+1}]
    global_load_dwordx4 v[{X1}:{X1+3}], v3, s[{S_X}:{S_X+1}] offset:1024
    """)
    a("s_waitcnt vmcnt(0)")
    stamp(a, "xload")
    for k in range(4):
        for (X, sm) in ((X0, 12), (X1, 14)):
            c = "0" if k == 0 else f"v{sm}"
            a(f"v_dot2_f32_bf16 v{sm}, v{X+k}, s{S_ONES}, {c}")
            c = "0" if k == 0 else f"v{sm+1}"
            a(f"v_dot2_f32_bf16 v{sm+1}, v{X+k}, v{X+k}, {c}")
    for (X, F) in ((X0, F0), (X1, F1)):
        for k in range(4):
            a(f"v_lshlrev_b32 v{F+2*k}, 16, v{X+k}")
            a(f"v_and_b32 v{F+2*k+1}, 0xffff0000, v{X+k}")
    wave_allreduce(a, SUM, TMP)
    M = [36, 37]; RS = [38, 39]
    for r, sm in enumerate((12, 14)):
        a(f"v_mul_f32 v{sm}, 0x3b000000, v{sm}")
        a(f"v_mul_f32 v{sm+1}, 0x3b000000, v{sm+1}")
    for r, sm in enumerate((12, 14)):
        a(f"v_fma_f32 v{sm+1}, -v{sm}, v{sm}, v{sm+1}")
        a(f"v_cvt_pk_bf16_f32 v{M[r]}, v{sm}, v{sm+1}")
    for r, sm in enumerate((12, 14)):
        a(f"v_and_b32 v{sm+1}, 0xffff0000, v{M[r]}")
        a(f"v_lshlrev_b32 v{M[r]}, 16, v{M[r]}")
        a(f"v_add_f32 v{sm+1}, 0x3727c5ac, v{sm+1}")
    for r, sm in enumerate((12, 14)):
        a(f"v_cvt_pk_bf16_f32 v{sm+1}, v{sm+1}, v{sm+1}")
    for r, sm in enumerate((12, 14)):
        a(f"v_lshlrev_b32 v{sm+1}, 16, v{sm+1}")
    for r, sm in enumerate((12, 14)):
        a(f"v_sqrt_f32 v{sm+1}, v{sm+1}")
    for r, sm in enumerate((12, 14)):
        a(f"v_cvt_pk_bf16_f32 v{sm+1}, v{sm+1}, v{sm+1}")
    for r, sm in enumerate((12, 14)):
        a(f"v_lshlrev_b32 v{sm+1}, 16, v{sm+1}")
    for r, sm in enumerate((12, 14)):
        a(f"v_rcp_f32 v{RS[r]}, v{sm+1}")
    for r, (F, X) in enumerate(((F0, X0), (F1, X1))):
        for k in range(8):
            a(f"v_sub_f32 v{F+k}, v{F+k}, v{M[r]}")
        for k in range(4):
            a(f"v_cvt_pk_bf16_f32 v{X+k}, v{F+2*k}, v{F+2*k+1}")
        for k in range(4):
            a(f"v_lshlrev_b32 v{F+2*k}, 16, v{X+k}")
            a(f"v_and_b32 v{F+2*k+1}, 0xffff0000, v{X+k}")
        for k in range(8):
            a(f"v_mul_f32 v{F+k}, v{F+k}, v{RS[r]}")
        for k in range(4):
            a(f"v_cvt_pk_bf16_f32 v{X+k}, v{F+2*k}, v{F+2*k+1}")
    a(f"""
    s_mul_i32 s4, s{S_WAVE}, {2*1088}
    v_lshlrev_b32 v3, 4, v1
    v_add_u32 v3, s4, v3
    ds_write_b128 v3, v[{X0}:{X0+3}]
    ds_write_b128 v3, v[{X1}:{X1+3}] offset:1088
    """)
    ws_base(a, 48, WS_STATS)
    a(f"""
    v_mov_b32 v40, v{M[0]}
    v_mov_b32 v41, v{RS[0]}
    v_mov_b32 v42, v{M[1]}
    v_mov_b32 v43, v{RS[1]}
    s_lshl_b32 s4, s3, 3
    v_mov_b32 v44, s4
    v_cmp_eq_u32 vcc, 0, v1
    s_and_saveexec_b64 s[50:51], vcc
    global_store_dwordx4 v44, v[40:43], s[48:49] sc1
    s_mov_b64 exec, s[50:51]
    s_waitcnt lgkmcnt(0)
    s_barrier
    """)
    a(f"""
    v_bfe_u32 v4, v1, 2, 2            ; r
    v_mul_u32_u24 v4, 1088, v4
    v_lshrrev_b32 v5, 4, v1           ; G
    v_lshlrev_b32 v5, 5, v5           ; 16G*2
    v_and_b32 v6, 3, v1
    v_lshlrev_b32 v6, 3, v6           ; 4c*2
    v_add3_u32 v4, v4, v5, v6
    s_lshl_b32 s4, s{S_WAVE}, 8       ; 128w*2
    v_add_u32 v4, s4, v4
    ds_read_b64_tr_b16 v[8:9], v4
    ds_read_b64_tr_b16 v[10:11], v4 offset:{4*1088}
    ds_read_b64_tr_b16 v[12:13], v4 offset:128
    ds_read_b64_tr_b16 v[14:15], v4 offset:{4*1088+128}
    """)
    ws_base(a, 48, WS_XNB)
    a(f"""
    s_lshl_b32 s4, s{S_J}, 13
    s_lshl_b32 s5, s{S_WAVE}, 11      ; 128w*16
    s_add_u32 s4, s4, s5
    v_lshlrev_b32 v5, 4, v1
    v_add_u32 v5, s4, v5
    s_waitcnt lgkmcnt(2)
    global_store_dwordx4 v5, v[8:11], s[48:49] sc1
    s_waitcnt lgkmcnt(0)
    global_store_dwordx4 v5, v[12:15], s[48:49] offset:1024 sc1
    """)

def kernel_header(a, label):
    a.raw(f".globl {label}")
    a.raw(".p2align 8")
    a.raw(f".type {label},@function")
    a.label(label)

def kernel_desc(label, vgpr=256):
    return f""".p2align 6
.amdhsa_kernel {label}
  .amdhsa_next_free_vgpr {vgpr}
  .amdhsa_next_free_sgpr 102
  .amdhsa_accum_offset {vgpr}
  .amdhsa_group_segment_fixed_size 0
  .amdhsa_kernarg_size 112
  .amdhsa_user_sgpr_count 2
  .amdhsa_user_sgpr_kernarg_segment_ptr 1
  .amdhsa_system_sgpr_workgroup_id_x 1
.end_amdhsa_kernel
"""

def exit_if_ge(a, n, lab):
    a(f"s_cmp_ge_u32 s2, {n}")
    a(f"s_cbranch_scc1 {lab}")

def build_multi(stages):
    a = Asm()
    head = "".join(f"; @launch kernel={lab} grid=({g},1,1) block=(256,1,1) lds={lds}\n" for lab, g, lds, fn in stages)
    a.raw('.amdgcn_target "amdgcn-amd-amdhsa--gfx950"')
    a.raw(".text")
    for li, (lab, g, lds, fn) in enumerate(stages):
        kernel_header(a, lab)
        exit_if_ge(a, g, f"L_exit2_{lab}")
        stamp(a, "RTstart"); stamp(a, "start")
        prologue(a)
        a(f"s_mov_b32 s{S_J}, s2")
        rep = int(os.environ.get("REP", "1"))
        if rep > 1:
            a("s_mov_b32 s100, 0")
            a.label(f"L_rep_{lab}")
            a("s_barrier")
            ST.n = 1; ST.names = ST.names[:1]
            stamp(a, "start")
        fn(a)
        a.label(f"L_exit_{lab}")
        if rep > 1:
            a("s_waitcnt vmcnt(0) lgkmcnt(0)")
            a("s_add_u32 s100, s100, 1")
            a(f"s_cmp_lt_u32 s100, {rep}")
            a(f"s_cbranch_scc1 L_rep_{lab}")
        stamp(a, "end"); stamp(a, "RTend")
        dump_stamps(a, li)
        a.label(f"L_exit2_{lab}")
        a("s_endpgm")
    body = a.render()
    tail = '.section .rodata,"a"\n' + "".join(kernel_desc(lab) for lab, g, lds, fn in stages)
    return head + body + tail

if __name__ == "__main__":
    import roles, gen
    if os.environ.get("STAMPS"): gen.STAMPS = True
    which = sys.argv[1] if len(sys.argv) > 1 else "multi"
    src = roles.build(which)
    out = sys.argv[2] if len(sys.argv) > 2 else f"cdna_kernels/{NAME}.s"
    open(out, "w").write(src)
    print("wrote", out, len(src), "bytes")
```

```python
from gen import *
import g1, ssm, g2

def build(which):
    if which == "ln":
        return build_multi([("ln_kernel", 256, 81920, ln_role), ("nop_kernel", 256, 0, lambda a: None)])
    if which == "g1":
        return build_multi([("ln_kernel", 256, 81920, ln_role),
                            ("g1_kernel", 256, 81920, lambda a: g1.g1_role(a, "L_exit_g1_kernel"))])
    if which == "ssm":
        return build_multi([("ln_kernel", 256, 81920, ln_role),
                            ("ssm_kernel", 256, 81920, ssm.ssm_role)])
    if which == "m4":
        return build_multi([("ln_kernel", 256, 81920, ln_role),
                            ("ssm_kernel", 256, 81920, ssm.ssm_role),
                            ("g1_kernel", 256, 81920, lambda a: g1.g1_role(a, "L_exit_g1_kernel")),
                            (NAME + "_kernel", 256, 81920, g2.g2_role)])
    raise ValueError(which)
_build0 = build
def build(which):
    if which == "g1x":
        return build_multi([("g1_kernel", 256, 81920, lambda a: g1.g1_role(a, "L_exit_g1_kernel")), ("nop_kernel", 256, 0, lambda a: None)])
    return _build0(which)
_build1 = build
def build(which):
    if which == "m4sc":
        return build_multi([("ln_kernel", 256, 81920, ln_role),
                            ("ssm_kernel", 256, 81920, ssm.ssm_role),
                            ("g1_kernel", 256, 81920, lambda a: g1.g1_role(a, "L_exit_g1_kernel")),
                            (NAME + "_kernel", 256, 81920, lambda a: g2.g2_role(a, sc=" sc1"))])
    return _build1(which)
```

```python
from gen import *

KC = 256; KCS = 4416; KCH = 4 * KCS
UB = KC + 2 * KCH; UCH = 4608
RED = UB + 2 * UCH + 64
TABCH = 33792; TABB = 16896; TROW = 528
XCH = 67584
L2E_HI = 0x3fb8aa3b; L2E_LO = 0x32a57060; LN2 = 0x3f317218; INV2PI = 0x3e22f983

def cmul(a, d, x, w):
    a(f"v_pk_mul_f32 v[{d}:{d+1}], v[{x}:{x+1}], v[{w}:{w+1}] op_sel:[0,0] op_sel_hi:[1,0]")
    a(f"v_pk_fma_f32 v[{d}:{d+1}], v[{x}:{x+1}], v[{w}:{w+1}], v[{d}:{d+1}] op_sel:[1,1,0] op_sel_hi:[0,1,1] neg_lo:[1,0,0]")

def exp_bf16(a, x, t1, t2):
    a(f"v_mul_f32 v{t1}, {L2E_HI:#x}, v{x}")
    a(f"v_mov_b32 v{t2}, {L2E_HI:#x}")
    a(f"v_fma_f32 v{t2}, v{x}, v{t2}, -v{t1}")
    a(f"v_fmac_f32 v{t2}, {L2E_LO:#x}, v{x}")
    a(f"v_exp_f32 v{t1}, v{t1}")
    a(f"v_mul_f32 v{t2}, {LN2:#x}, v{t2}")
    a(f"v_fma_f32 v{x}, v{t1}, v{t2}, v{t1}")
    a(f"v_cvt_pk_bf16_f32 v{x}, v{x}, v{x}")
    a(f"v_lshlrev_b32 v{x}, 16, v{x}")

A_ROWS = {}
def _rows():
    lo = list(range(8)) + [256, 258, 260, 262, 264] + [512, 516, 520]
    hi = [768, 772, 776] + [1024, 1032, 1280, 1288, 1536, 1544, 1792, 1800]
    for hh, lst in ((0, lo), (1, hi)):
        for i, kap in enumerate(lst):
            A_ROWS[kap] = 8 * (i // 4) + 4 * hh + i % 4
_rows()

def kgen(a):
    sCH, sMH = 60, 61
    sDT, sD = 62, 63
    a(f"""
    ; ---------------- K-gen
    s_lshr_b32 s{sCH}, s{S_WAVE}, 1
    s_and_b32 s{sMH}, s{S_WAVE}, 1
    s_lshl_b32 s3, s{S_J}, 2
    s_waitcnt lgkmcnt(0)
    s_load_dword s{sDT}, s[{S_LOGDT}:{S_LOGDT+1}], s3
    s_load_dword s{sD}, s[{S_DSK}:{S_DSK+1}], s3
    s_lshl_b32 s4, s{S_J}, 1
    s_add_u32 s4, s4, s{sCH}
    s_lshl_b32 s4, s4, 8
    s_lshl_b32 s5, s{sMH}, 7
    s_add_u32 s4, s4, s5
    v_lshlrev_b32 v3, 1, v1
    v_add_u32 v3, s4, v3
    global_load_ushort v4, v3, s[{S_LOGA}:{S_LOGA+1}]
    global_load_ushort v5, v3, s[{S_AIM}:{S_AIM+1}]
    global_load_ushort v6, v3, s[{S_CRE}:{S_CRE+1}]
    global_load_ushort v7, v3, s[{S_CIM}:{S_CIM+1}]
    s_waitcnt lgkmcnt(0)
    s_lshl_b32 s5, s{sCH}, 4
    s_lshr_b32 s{sDT}, s{sDT}, s5
    s_lshl_b32 s{sDT}, s{sDT}, 16
    s_lshr_b32 s{sD}, s{sD}, s5
    s_lshl_b32 s{sD}, s{sD}, 16
    v_mov_b32 v8, s{sDT}
    """)
    exp_bf16(a, 8, 9, 10)
    a("s_waitcnt vmcnt(0)")
    for r in (4, 5, 6, 7): a(f"v_lshlrev_b32 v{r}, 16, v{r}")
    stamp(a, "params")
    exp_bf16(a, 4, 9, 10)
    W1, W8, W256, W2, W4, W16 = 16, 18, 20, 22, 24, 26
    C = 12
    a(f"""
    v_mul_f32 v14, v4, v8
    v_mul_f32 v14, {L2E_HI | 0x80000000:#x}, v14       ; -Are*dt*log2e
    v_mul_f32 v15, v5, v8
    v_mul_f32 v15, {INV2PI:#x}, v15
    v_add_f32 v8, v8, v8
    v_mul_f32 v{C}, v6, v8
    v_mul_f32 v{C+1}, v7, v8
    """)
    for (W, p) in ((W1, 1.0), (W8, 8.0), (W256, 256.0)):
        if p == 1.0:
            a(f"v_exp_f32 v9, v14"); a(f"v_cos_f32 v{W}, v15"); a(f"v_sin_f32 v{W+1}, v15")
        else:
            lit = {8.0: "0x41000000", 256.0: "0x43800000"}[p]
            a(f"v_mul_f32 v10, {lit}, v14"); a(f"v_mul_f32 v11, {lit}, v15")
            a(f"v_exp_f32 v9, v10"); a(f"v_cos_f32 v{W}, v11"); a(f"v_sin_f32 v{W+1}, v11")
        a(f"v_mul_f32 v{W}, v{W}, v9"); a(f"v_mul_f32 v{W+1}, v{W+1}, v9")
    cmul(a, W2, W1, W1); cmul(a, W16, W8, W8); cmul(a, W4, W2, W2)
    a(f"""
    s_mul_i32 s4, s{sCH}, {TABCH}
    s_lshl_b32 s5, s{sMH}, 8
    s_add_u32 s4, s4, s5
    v_lshlrev_b32 v3, 2, v1
    v_add_u32 v3, s4, v3
    """)
    pk = [28, 29, 30, 31]; pki = [0]
    def emitA(kap, x):
        t = pk[pki[0] % 4]; pki[0] += 1
        a(f"v_cvt_pk_bf16_f32 v{t}, v{x}, -v{x+1}")
        a(f"ds_write_b32 v3, v{t} offset:{A_ROWS[kap]*TROW}")
    def emitB(j, x):
        t = pk[pki[0] % 4]; pki[0] += 1
        a(f"v_cvt_pk_bf16_f32 v{t}, v{x}, v{x+1}")
        a(f"ds_write_b32 v3, v{t} offset:{TABB + j*TROW}")
    E = [32, 34, 36, 38]
    a(f"v_mov_b32 v{E[0]}, 1.0"); a(f"v_mov_b32 v{E[0]+1}, 0")
    emitB(0, E[0]); emitB(1, W8)
    prev = {0: E[0], 1: W8}
    cc = [40, 42]
    coarse = []
    regs = {}
    def mk(kap, src, w):
        coarse.append((kap, src, w))
    R = {0: C}
    pool = iter(range(44, 100, 2))
    plan = [(1, 0, W1), (256, 0, W256), (2, 1, W1), (512, 256, W256), (3, 2, W1), (258, 256, W2), (4, 3, W1), (768, 512, W256),
            (5, 4, W1), (260, 256, W4), (6, 5, W1), (1024, 768, W256), (7, 6, W1), (262, 258, W4), (264, 256, W8), (1280, 1024, W256),
            (516, 512, W4), (520, 512, W8), (1536, 1280, W256), (772, 768, W4), (776, 768, W8), (1792, 1536, W256),
            (1032, 1024, W8), (1288, 1280, W8), (1544, 1536, W8), (1800, 1792, W8)]
    emitA(0, C)
    j = 2; pi = 0
    while j < 32 or pi < len(plan):
        if j < 32:
            d = E[(j % 2) + 2 * ((j // 2) % 2)]
            cmul(a, d, prev[j % 2], W16);
            pend = (j, d); prev[j % 2] = d; j += 1
        else: pend = None
        outs = []
        for _ in range(1 if j < 32 else 4):
            if pi < len(plan):
                kap, src, w = plan[pi]; pi += 1
                d2 = next(pool); R[kap] = d2
                cmul(a, d2, R[src], w); outs.append((kap, d2))
        if pend: emitB(*pend)
        for kap, d2 in outs: emitA(kap, d2)
    stamp(a, "tables")
    D = 32
    a(f"""
    v_and_b32 v4, 31, v1
    v_mul_u32_u24 v4, {TROW}, v4
    v_lshrrev_b32 v5, 5, v1
    v_lshlrev_b32 v5, 4, v5
    v_add3_u32 v4, v4, v5, s4
    s_waitcnt lgkmcnt(0)
    """)
    FA, FB = 64, 96
    for tt in range(8):
        a(f"ds_read_b128 v[{FA+4*tt}:{FA+4*tt+3}], v4 offset:{tt*32}")
        a(f"ds_read_b128 v[{FB+4*tt}:{FB+4*tt+3}], v4 offset:{TABB + tt*32}")
    for tt in range(8):
        a(f"s_waitcnt lgkmcnt({min(15, 2*(7-tt))})")
        c = "0" if tt == 0 else f"v[{D}:{D+15}]"
        a(f"v_mfma_f32_32x32x16_bf16 v[{D}:{D+15}], v[{FA+4*tt}:{FA+4*tt+3}], v[{FB+4*tt}:{FB+4*tt+3}], {c}")
    stamp(a, "kmfma")
    a(f"""
    s_lshl_b32 s4, s{sCH}, 12
    s_add_u32 s4, s4, {XCH}
    v_lshlrev_b32 v3, 4, v1
    v_add_u32 v3, s4, v3
    s_cmp_eq_u32 s{sMH}, 0
    s_cbranch_scc1 L_kg_a
    """)
    for g in range(4):
        a(f"ds_write_b128 v3, v[{D+4*g}:{D+4*g+3}] offset:{g*1024}")
    a("s_waitcnt lgkmcnt(0)")
    a.label("L_kg_a")
    a("s_barrier")
    a(f"s_cmp_eq_u32 s{sMH}, 0")
    a("s_cbranch_scc0 L_kg_b")
    for g in range(4):
        a(f"ds_read_b128 v[{64+4*g}:{64+4*g+3}], v3 offset:{g*1024}")
    a("s_waitcnt lgkmcnt(0)")
    for i in range(0, 16, 2):
        a(f"v_pk_add_f32 v[{D+i}:{D+i+1}], v[{D+i}:{D+i+1}], v[{64+i}:{64+i+1}]")
    a(f"""
    s_mul_i32 s4, s{sCH}, {KCH}
    s_add_u32 s4, s4, {KC + 4112 - 512*7}
    v_and_b32 v4, 31, v1
    v_lshlrev_b32 v4, 4, v4
    v_sub_u32 v4, s4, v4
    v_and_b32 v5, 1, v1
    v_cmp_eq_u32 vcc, 1, v5
    """)
    def blk(b, vals, P):
        for k, (lo, hi) in enumerate(vals):
            a(f"v_cvt_pk_bf16_f32 v{P+k}, v{lo}, v{hi}")
        a(f"ds_write_b128 v4, v[{P}:{P+3}] offset:{512*(7-b)}")
    d = lambda i: D + i
    for bb in range(4):
        a(f"v_cndmask_b32 v{80+bb}, v{d(3+2*bb)}, v{d(4+2*bb)}, vcc")
    a("s_mov_b32 exec_lo, -1")
    a("s_mov_b32 exec_hi, 0")
    blk(0, [(d(7), d(6)), (d(5), d(4)), (d(3), d(2)), (d(1), d(0))], 64)
    blk(1, [(d(12), d(11)), (d(10), d(10)), (d(10), d(9)), (d(8), d(8))], 68)
    blk(2, [(d(15), d(15)), (d(14), d(14)), (d(14), d(13)), (d(13), d(13))], 72)
    a("s_mov_b32 exec_lo, 0")
    a("s_mov_b32 exec_hi, -1")
    blk(3, [(d(2), d(2)), (d(1), d(1)), (d(1), d(0)), (d(0), d(0))], 64 + 20)
    for bb in range(4):
        L, H = d(3 + 2 * bb), d(4 + 2 * bb)
        blk(4 + bb, [(H, H), (H, 80 + bb), (L, L), (L, L)], 88 + 4 * bb)
    a("s_mov_b64 exec, -1")
    a(f"""
    v_mov_b32 v64, 0
    v_mov_b32 v65, 0
    v_mov_b32 v66, 0
    v_mov_b32 v67, 0
    s_mul_i32 s4, s{sCH}, {KCH}
    s_add_u32 s4, s4, {KC}
    v_lshlrev_b32 v4, 4, v1
    v_add_u32 v5, 4096, v4
    v_cmp_gt_u32 vcc, 2, v1
    v_cndmask_b32 v4, v5, v4, vcc
    v_add_u32 v4, s4, v4
    s_mov_b64 exec, 0xfffff
    ds_write_b128 v4, v[64:67]
    s_mov_b64 exec, -1
    s_waitcnt lgkmcnt(0)
    """)
    a.label("L_kg_b")
    a("s_barrier")
    stamp(a, "copy0")
    a(f"""
    s_mul_i32 s4, s{sCH}, {KCH}
    s_lshl_b32 s5, s{sMH}, 10
    s_add_u32 s4, s4, s5
    s_add_u32 s4, s4, {KC}
    v_lshlrev_b32 v4, 4, v1
    v_add_u32 v4, s4, v4
    """)
    for ps in range(3):
        Wd = 64 + 24 * ps
        if ps == 2:
            a(f"s_cmp_eq_u32 s{sMH}, 0")
            a("s_cbranch_scc0 L_kg_c")
            a("s_mov_b64 exec, 0xfffff")
        a(f"ds_read_b128 v[{Wd}:{Wd+3}], v4 offset:{ps*2048}")
        a(f"ds_read_b128 v[{Wd+4}:{Wd+7}], v4 offset:{ps*2048+16}")
        a("s_waitcnt lgkmcnt(0)")
        for k in range(4):
            a(f"v_alignbit_b32 v{Wd+8+k}, v{Wd+k+1}, v{Wd+k}, 16")
            a(f"v_mov_b32 v{Wd+12+k}, v{Wd+k+1}")
            a(f"v_alignbit_b32 v{Wd+16+k}, v{Wd+k+2}, v{Wd+k+1}, 16")
        for c in range(3):
            a(f"ds_write_b128 v4, v[{Wd+8+4*c}:{Wd+8+4*c+3}] offset:{ps*2048 + (c+1)*KCS}")
        if ps == 2:
            a("s_mov_b64 exec, -1")
            a.label("L_kg_c")

def load_u(a):
    sX = 64
    a("s_waitcnt lgkmcnt(0)")
    ws_base(a, sX, WS_XNB)
    a(f"""
    v_lshrrev_b32 v8, 1, v0
    v_lshlrev_b32 v8, 13, v8
    v_and_b32 v9, 1, v0
    v_lshlrev_b32 v10, 4, v9
    s_lshl_b32 s4, s{S_J}, 5
    v_add3_u32 v8, v8, v10, s4
    v_add_u32 v10, 0x100000, v8
    global_load_dwordx4 v[200:203], v8, s[{sX}:{sX+1}] sc1
    global_load_dwordx4 v[204:207], v10, s[{sX}:{sX+1}] sc1
    """)

def store_u(a):
    a(f"""
    v_lshrrev_b32 v8, 1, v0
    v_lshlrev_b32 v8, 4, v8
    v_and_b32 v9, 1, v0
    v_mul_u32_u24 v9, {UCH}, v9
    v_add_u32 v8, v8, v9
    v_add_u32 v8, {UB + 512}, v8
    s_waitcnt vmcnt(0)
    ds_write_b128 v8, v[200:203]
    ds_write_b128 v8, v[204:207] offset:2048
    v_mov_b32 v200, 0
    v_mov_b32 v201, 0
    v_mov_b32 v202, 0
    v_mov_b32 v203, 0
    v_lshrrev_b32 v9, 5, v0
    v_mul_u32_u24 v9, {UCH}, v9
    v_and_b32 v10, 31, v0
    v_lshl_add_u32 v9, v10, 4, v9
    v_add_u32 v9, {UB}, v9
    s_cmp_eq_u32 s{S_WAVE}, 0
    s_cbranch_scc0 L_su_a
    ds_write_b128 v9, v[200:203]
    """)
    a.label("L_su_a")
    a(f"""
    s_cmp_eq_u32 s{S_WAVE}, 1
    s_cbranch_scc0 L_su_b
    v_lshlrev_b32 v9, 4, v1
    v_add_u32 v9, {UB + 2*UCH}, v9
    s_mov_b64 exec, 15
    ds_write_b128 v9, v[200:203]
    s_mov_b64 exec, -1
    """)
    a.label("L_su_b")

def conv(a):
    sCH, sPAR = 60, 61; sD = 63
    sAO = 66
    vF, vG, vF0, vG0 = 4, 5, 6, 7
    ACC = 8
    FS = [40, 104]; GS = [72, 136]
    a(f"""
    ; ---------------- conv
    v_and_b32 v168, 15, v1            ; m / n
    v_lshrrev_b32 v169, 4, v1         ; q
    v_and_b32 v170, 3, v168
    v_sub_u32 v170, 3, v170
    v_mul_u32_u24 v170, {KCS}, v170
    v_lshrrev_b32 v171, 2, v168
    v_lshlrev_b32 v171, 3, v171
    v_sub_u32 v170, v170, v171
    v_lshl_add_u32 v170, v169, 4, v170
    s_mul_i32 s4, s{sCH}, {KCH}
    s_add_u32 s4, s4, {KC + 4120 - 4096}
    v_add_u32 v{vF0}, s4, v170
    s_lshl_b32 s5, s{sPAR}, 6
    v_subrev_u32 v{vF}, s5, v{vF0}
    v_lshlrev_b32 v170, 5, v168
    v_lshl_add_u32 v170, v169, 4, v170
    s_mul_i32 s4, s{sCH}, {UCH}
    s_add_u32 s4, s4, {UB}
    v_add_u32 v{vG0}, s4, v170
    v_subrev_u32 v{vG}, s5, v{vG0}
    """)
    def loads(k):
        F = FS[k % 2]; Gr = GS[k % 2]
        for i in range(8):
            off = 64 * (64 - 1 - 2 * k - 8 * i)
            aa = i
            a(f"ds_read_b128 v[{Gr+4*aa}:{Gr+4*aa+3}], v{vG} offset:{512*(aa+1) - 64 - 128*k}")
            a(f"ds_read_b64 v[{F+4*i}:{F+4*i+1}], v{vF} offset:{off}")
            a(f"ds_read_b64 v[{F+4*i+2}:{F+4*i+3}], v{vF} offset:{off+8}")
    def mm(k):
        F = FS[k % 2]; Gr = GS[k % 2]
        for i in range(8):
            for aa in range(8 - i):
                t = i + aa; d = ACC + 4 * t
                c = "0" if (k == 0 and i == 0) else f"v[{d}:{d+3}]"
                a(f"v_mfma_f32_16x16x32_bf16 v[{d}:{d+3}], v[{F+4*i}:{F+4*i+3}], v[{Gr+4*aa}:{Gr+4*aa+3}], {c}")
    loads(0)
    for k in range(4):
        a("s_waitcnt lgkmcnt(0)")
        if k < 3: loads(k + 1)
        else:
            a(f"ds_read_b64 v[{FS[0]}:{FS[0]+1}], v{vF0} offset:4096")
            a(f"ds_read_b64 v[{FS[0]+2}:{FS[0]+3}], v{vF0} offset:{4096+8}")
            a(f"s_lshl_b32 s5, s{sPAR}, 11")
            a(f"v_add_u32 v{vG}, s5, v{vG0}")
            for tt in range(4):
                a(f"ds_read_b128 v[{GS[0]+4*tt}:{GS[0]+4*tt+3}], v{vG} offset:{512*(tt+1)}")
        mm(k)
    a("s_waitcnt lgkmcnt(0)")
    stamp(a, "convloop")
    a(f"s_cmp_eq_u32 s{sPAR}, 0")
    a("s_cbranch_scc0 L_cv_p1")
    def finish(par, lab):
        for tt in range(4):
            d = ACC + 4 * (4 * par + tt)
            a(f"v_mfma_f32_16x16x32_bf16 v[{d}:{d+3}], v[{FS[0]}:{FS[0]+3}], v[{GS[0]+4*tt}:{GS[0]+4*tt+3}], v[{d}:{d+3}]")
        a(f"""
        s_lshl_b32 s4, s{S_WAVE}, 12
        s_add_u32 s4, s4, {RED}
        v_lshlrev_b32 v170, 4, v1
        v_add_u32 v171, s4, v170
        s_xor_b32 s4, s{S_WAVE}, 1
        s_lshl_b32 s4, s4, 12
        s_add_u32 s4, s4, {RED}
        v_add_u32 v170, s4, v170
        """)
        for tt in range(4):
            d = ACC + 4 * (4 * (1 - par) + tt)
            a(f"ds_write_b128 v171, v[{d}:{d+3}] offset:{tt*1024}")
        a(f"""
        v_lshlrev_b32 v172, 5, v168
        v_lshl_add_u32 v172, v169, 3, v172
        s_mul_i32 s4, s{sCH}, {UCH}
        s_add_u32 s4, s4, {UB + 512 + par*2048}
        v_add_u32 v173, s4, v172
        """)
        for tt in range(4):
            a(f"ds_read_b64 v[{72+2*tt}:{72+2*tt+1}], v173 offset:{tt*512}")
        a("s_waitcnt lgkmcnt(0)")
        a("s_barrier")
        for tt in range(4):
            a(f"ds_read_b128 v[{40+4*tt}:{40+4*tt+3}], v170 offset:{tt*1024}")
        ws_base(a, sAO, WS_AO)
        a(f"""
        s_lshl_b32 s4, s{S_J}, 1
        s_add_u32 s4, s4, s{sCH}
        s_lshl_b32 s4, s4, 12
        s_add_u32 s4, s4, {par*2048}
        v_add_u32 v172, s4, v172
        s_waitcnt lgkmcnt(0)
        """)
        for tt in range(4):
            d = ACC + 4 * (4 * par + tt); p = 40 + 4 * tt; u = 72 + 2 * tt; T = 80 + 8 * tt
            a(f"v_pk_add_f32 v[{d}:{d+1}], v[{d}:{d+1}], v[{p}:{p+1}]")
            a(f"v_pk_add_f32 v[{d+2}:{d+3}], v[{d+2}:{d+3}], v[{p+2}:{p+3}]")
            a(f"v_cvt_pk_bf16_f32 v{p}, v{d}, v{d+1}")
            a(f"v_cvt_pk_bf16_f32 v{p+1}, v{d+2}, v{d+3}")
            for h2 in range(2):
                a(f"v_lshlrev_b32 v{d+2*h2}, 16, v{p+h2}")
                a(f"v_and_b32 v{d+2*h2+1}, 0xffff0000, v{p+h2}")
                a(f"v_lshlrev_b32 v{T+2*h2}, 16, v{u+h2}")
                a(f"v_and_b32 v{T+2*h2+1}, 0xffff0000, v{u+h2}")
            for e in range(4):
                a(f"v_mul_f32 v{T+e}, s{sD}, v{T+e}")
            a(f"v_cvt_pk_bf16_f32 v{p}, v{T}, v{T+1}")
            a(f"v_cvt_pk_bf16_f32 v{p+1}, v{T+2}, v{T+3}")
            for h2 in range(2):
                a(f"v_lshlrev_b32 v{T+2*h2}, 16, v{p+h2}")
                a(f"v_and_b32 v{T+2*h2+1}, 0xffff0000, v{p+h2}")
            a(f"v_pk_add_f32 v[{d}:{d+1}], v[{d}:{d+1}], v[{T}:{T+1}]")
            a(f"v_pk_add_f32 v[{d+2}:{d+3}], v[{d+2}:{d+3}], v[{T+2}:{T+3}]")
            a(f"v_cvt_pk_bf16_f32 v{p+2}, v{d}, v{d+1}")
            a(f"v_cvt_pk_bf16_f32 v{p+3}, v{d+2}, v{d+3}")
            a(f"global_store_dwordx2 v172, v[{p+2}:{p+3}], s[{sAO}:{sAO+1}] offset:{tt*512} sc1")
    finish(0, "a")
    a("s_branch L_cv_end")
    a.label("L_cv_p1")
    finish(1, "b")
    a.label("L_cv_end")

def ssm_role(a, fused=False):
    load_u(a)
    kgen(a)
    stamp(a, "kgen_end")
    a("s_barrier")
    store_u(a)
    a("s_waitcnt lgkmcnt(0)")
    a("s_barrier")
    stamp(a, "u_done")
    conv(a)
```

```python
from gen import *
import ssm
from ssm import KC, KCS, KCH, UB, UCH, RED, TABCH, TABB, TROW, XCH, L2E_HI, INV2PI, cmul, exp_bf16, A_ROWS

LNB = XCH

def ln_part(a, K):
    X0, X1 = 4, 8
    SUM = [12, 13, 14, 15]; TMP = [16, 17, 18, 19]
    F0, F1 = 20, 28
    for k in range(4):
        for (X, sm) in ((X0, 12), (X1, 14)):
            c = "0" if k == 0 else f"v{sm}"
            a(f"v_dot2_f32_bf16 v{sm}, v{X+k}, s{S_ONES}, {c}")
            c = "0" if k == 0 else f"v{sm+1}"
            a(f"v_dot2_f32_bf16 v{sm+1}, v{X+k}, v{X+k}, {c}")
    for (X, F) in ((X0, F0), (X1, F1)):
        for k in range(4):
            a(f"v_lshlrev_b32 v{F+2*k}, 16, v{X+k}")
            a(f"v_and_b32 v{F+2*k+1}, 0xffff0000, v{X+k}")
    wave_allreduce(a, SUM, TMP)
    M = [36, 37]; RS = [38, 39]
    for r, sm in enumerate((12, 14)):
        a(f"v_mul_f32 v{sm}, 0x3b000000, v{sm}")
        a(f"v_mul_f32 v{sm+1}, 0x3b000000, v{sm+1}")
    for r, sm in enumerate((12, 14)):
        a(f"v_fma_f32 v{sm+1}, -v{sm}, v{sm}, v{sm+1}")
        a(f"v_cvt_pk_bf16_f32 v{M[r]}, v{sm}, v{sm+1}")
    for r, sm in enumerate((12, 14)):
        a(f"v_and_b32 v{sm+1}, 0xffff0000, v{M[r]}")
        a(f"v_lshlrev_b32 v{M[r]}, 16, v{M[r]}")
        a(f"v_add_f32 v{sm+1}, 0x3727c5ac, v{sm+1}")
    for r, sm in enumerate((12, 14)):
        a(f"v_cvt_pk_bf16_f32 v{sm+1}, v{sm+1}, v{sm+1}")
    for r, sm in enumerate((12, 14)):
        a(f"v_lshlrev_b32 v{sm+1}, 16, v{sm+1}")
    for r, sm in enumerate((12, 14)):
        a(f"v_sqrt_f32 v{sm+1}, v{sm+1}")
    for r, sm in enumerate((12, 14)):
        a(f"v_cvt_pk_bf16_f32 v{sm+1}, v{sm+1}, v{sm+1}")
    for r, sm in enumerate((12, 14)):
        a(f"v_lshlrev_b32 v{sm+1}, 16, v{sm+1}")
    for r, sm in enumerate((12, 14)):
        a(f"v_rcp_f32 v{RS[r]}, v{sm+1}")
    for r, (F, X) in enumerate(((F0, X0), (F1, X1))):
        for k in range(8):
            a(f"v_sub_f32 v{F+k}, v{F+k}, v{M[r]}")
        for k in range(4):
            a(f"v_cvt_pk_bf16_f32 v{X+k}, v{F+2*k}, v{F+2*k+1}")
        for k in range(4):
            a(f"v_lshlrev_b32 v{F+2*k}, 16, v{X+k}")
            a(f"v_and_b32 v{F+2*k+1}, 0xffff0000, v{X+k}")
        for k in range(8):
            a(f"v_mul_f32 v{F+k}, v{F+k}, v{RS[r]}")
        for k in range(4):
            a(f"v_cvt_pk_bf16_f32 v{X+k}, v{F+2*k}, v{F+2*k+1}")
    a(f"""
    s_mul_i32 s4, s{S_WAVE}, {2*1088}
    s_add_u32 s4, s4, {LNB}
    v_lshlrev_b32 v3, 4, v1
    v_add_u32 v3, s4, v3
    ds_write_b128 v3, v[{X0}:{X0+3}]
    ds_write_b128 v3, v[{X1}:{X1+3}] offset:1088
    s_add_u32 s52, s{S_WS}, {WS_STATS:#x}
    s_addc_u32 s53, s{S_WS+1}, 0
    v_mov_b32 v40, v{M[0]}
    v_mov_b32 v41, v{RS[0]}
    v_mov_b32 v42, v{M[1]}
    v_mov_b32 v43, v{RS[1]}
    s_lshl_b32 s4, s{S_J}, 6
    s_lshl_b32 s5, s{S_WAVE}, 4
    s_add_u32 s4, s4, s5
    v_mov_b32 v44, s4
    s_mov_b64 exec, 1
    global_store_dwordx4 v44, v[40:43], s[52:53] sc1
    s_mov_b64 exec, -1
    v_bfe_u32 v4, v1, 2, 2            ; r
    v_mul_u32_u24 v4, 1088, v4
    v_lshrrev_b32 v5, 4, v1           ; G
    v_lshlrev_b32 v5, 5, v5           ; 16G*2
    v_and_b32 v6, 3, v1
    v_lshlrev_b32 v6, 3, v6           ; 4c*2
    v_add3_u32 v4, v4, v5, v6
    s_lshl_b32 s4, s{S_WAVE}, 8       ; 128w*2
    s_add_u32 s4, s4, {LNB}
    v_add_u32 v4, s4, v4
    s_add_u32 s52, s{S_WS}, {WS_XNB:#x}
    s_addc_u32 s53, s{S_WS+1}, 0
    s_lshl_b32 s4, s{S_J}, 13
    s_lshl_b32 s5, s{S_WAVE}, 11      ; 128w*16
    s_add_u32 s4, s4, s5
    v_lshlrev_b32 v5, 4, v1
    v_add_u32 v5, s4, v5
    s_waitcnt lgkmcnt(0)
    s_barrier
    ds_read_b64_tr_b16 v[8:9], v4
    ds_read_b64_tr_b16 v[10:11], v4 offset:{4*1088}
    ds_read_b64_tr_b16 v[12:13], v4 offset:128
    ds_read_b64_tr_b16 v[14:15], v4 offset:{4*1088+128}
    s_waitcnt lgkmcnt(2)
    global_store_dwordx4 v5, v[8:11], s[52:53] sc1
    s_waitcnt lgkmcnt(0)
    global_store_dwordx4 v5, v[12:15], s[52:53] offset:1024 sc1
    """)

PRM = 210
EPV = 214
sCH, sMH, sDT, sD = 60, 61, 62, 63

def kgen_tables(a):
    a(f"""
    s_lshl_b32 s5, s{sCH}, 4
    s_lshr_b32 s{sDT}, s{sDT}, s5
    s_lshl_b32 s{sDT}, s{sDT}, 16
    s_lshr_b32 s{sD}, s{sD}, s5
    s_lshl_b32 s{sD}, s{sD}, 16
    v_mov_b32 v8, s{sDT}
    """)
    exp_bf16(a, 8, 9, 10)
    for i, r in enumerate((4, 5, 6, 7)): a(f"v_lshlrev_b32 v{r}, 16, v{PRM+i}")
    exp_bf16(a, 4, 9, 10)
    W1, W8, W256, W2, W4, W16 = 16, 18, 20, 22, 24, 26
    C = 12
    a(f"""
    v_mul_f32 v14, v4, v8
    v_mul_f32 v14, {L2E_HI | 0x80000000:#x}, v14       ; -Are*dt*log2e
    v_mul_f32 v15, v5, v8
    v_mul_f32 v15, {INV2PI:#x}, v15
    v_add_f32 v8, v8, v8
    v_mul_f32 v{C}, v6, v8
    v_mul_f32 v{C+1}, v7, v8
    """)
    for (W, p) in ((W1, 1.0), (W8, 8.0), (W256, 256.0)):
        if p == 1.0:
            a(f"v_exp_f32 v9, v14"); a(f"v_cos_f32 v{W}, v15"); a(f"v_sin_f32 v{W+1}, v15")
        else:
            lit = {8.0: "0x41000000", 256.0: "0x43800000"}[p]
            a(f"v_mul_f32 v10, {lit}, v14"); a(f"v_mul_f32 v11, {lit}, v15")
            a(f"v_exp_f32 v9, v10"); a(f"v_cos_f32 v{W}, v11"); a(f"v_sin_f32 v{W+1}, v11")
        a(f"v_mul_f32 v{W}, v{W}, v9"); a(f"v_mul_f32 v{W+1}, v{W+1}, v9")
    cmul(a, W2, W1, W1); cmul(a, W16, W8, W8); cmul(a, W4, W2, W2)
    a(f"""
    s_mul_i32 s4, s{sCH}, {TABCH}
    s_lshl_b32 s5, s{sMH}, 8
    s_add_u32 s4, s4, s5
    v_lshlrev_b32 v3, 2, v1
    v_add_u32 v3, s4, v3
    """)
    pk = [28, 29, 30, 31]; pki = [0]
    def emitA(kap, x):
        t = pk[pki[0] % 4]; pki[0] += 1
        a(f"v_cvt_pk_bf16_f32 v{t}, v{x}, -v{x+1}")
        a(f"ds_write_b32 v3, v{t} offset:{A_ROWS[kap]*TROW}")
    def emitB(j, x):
        t = pk[pki[0] % 4]; pki[0] += 1
        a(f"v_cvt_pk_bf16_f32 v{t}, v{x}, v{x+1}")
        a(f"ds_write_b32 v3, v{t} offset:{TABB + j*TROW}")
    E = [32, 34, 36, 38]
    a(f"v_mov_b32 v{E[0]}, 1.0"); a(f"v_mov_b32 v{E[0]+1}, 0")
    emitB(0, E[0]); emitB(1, W8)
    prev = {0: E[0], 1: W8}
    R = {0: C}
    pool = iter(range(44, 100, 2))
    plan = [(1, 0, W1), (256, 0, W256), (2, 1, W1), (512, 256, W256), (3, 2, W1), (258, 256, W2), (4, 3, W1), (768, 512, W256),
            (5, 4, W1), (260, 256, W4), (6, 5, W1), (1024, 768, W256), (7, 6, W1), (262, 258, W4), (264, 256, W8), (1280, 1024, W256),
            (516, 512, W4), (520, 512, W8), (1536, 1280, W256), (772, 768, W4), (776, 768, W8), (1792, 1536, W256),
            (1032, 1024, W8), (1288, 1280, W8), (1544, 1536, W8), (1800, 1792, W8)]
    emitA(0, C)
    j = 2; pi = 0
    while j < 32 or pi < len(plan):
        if j < 32:
            d = E[(j % 2) + 2 * ((j // 2) % 2)]
            cmul(a, d, prev[j % 2], W16)
            pend = (j, d); prev[j % 2] = d; j += 1
        else: pend = None
        outs = []
        for _ in range(1 if j < 32 else 4):
            if pi < len(plan):
                kap, src, w = plan[pi]; pi += 1
                d2 = next(pool); R[kap] = d2
                cmul(a, d2, R[src], w); outs.append((kap, d2))
        if pend: emitB(*pend)
        for kap, d2 in outs: emitA(kap, d2)
    stamp(a, "tables")
    a(f"""
    v_and_b32 v4, 31, v1
    v_mul_u32_u24 v4, {TROW}, v4
    v_lshrrev_b32 v5, 5, v1
    v_lshlrev_b32 v5, 4, v5
    v_add3_u32 v4, v4, v5, s4
    s_waitcnt lgkmcnt(0)
    """)
    D = 32; FA, FB = 64, 96
    for tt in range(8):
        a(f"ds_read_b128 v[{FA+4*tt}:{FA+4*tt+3}], v4 offset:{tt*32}")
        a(f"ds_read_b128 v[{FB+4*tt}:{FB+4*tt+3}], v4 offset:{TABB + tt*32}")
    for tt in range(8):
        a(f"s_waitcnt lgkmcnt({min(15, 2*(7-tt))})")
        c = "0" if tt == 0 else f"v[{D}:{D+15}]"
        a(f"v_mfma_f32_32x32x16_bf16 v[{D}:{D+15}], v[{FA+4*tt}:{FA+4*tt+3}], v[{FB+4*tt}:{FB+4*tt+3}], {c}")

def kgen_rest(a):
    D = 32
    a(f"""
    s_lshl_b32 s4, s{sCH}, 12
    s_add_u32 s4, s4, {XCH}
    v_lshlrev_b32 v3, 4, v1
    v_add_u32 v3, s4, v3
    s_cmp_eq_u32 s{sMH}, 0
    s_cbranch_scc1 L_kg_a
    """)
    for g in range(4):
        a(f"ds_write_b128 v3, v[{D+4*g}:{D+4*g+3}] offset:{g*1024}")
    a("s_waitcnt lgkmcnt(0)")
    a.label("L_kg_a")
    a("s_barrier")
    a(f"s_cmp_eq_u32 s{sMH}, 0")
    a("s_cbranch_scc0 L_kg_b")
    for g in range(4):
        a(f"ds_read_b128 v[{64+4*g}:{64+4*g+3}], v3 offset:{g*1024}")
    a("s_waitcnt lgkmcnt(0)")
    for i in range(0, 16, 2):
        a(f"v_pk_add_f32 v[{D+i}:{D+i+1}], v[{D+i}:{D+i+1}], v[{64+i}:{64+i+1}]")
    a(f"""
    s_mul_i32 s4, s{sCH}, {KCH}
    s_add_u32 s4, s4, {KC + 4112 - 512*7}
    v_and_b32 v4, 31, v1
    v_lshlrev_b32 v4, 4, v4
    v_sub_u32 v4, s4, v4
    v_and_b32 v5, 1, v1
    v_cmp_eq_u32 vcc, 1, v5
    """)
    def blk(b, vals, P):
        for k, (lo, hi) in enumerate(vals):
            a(f"v_cvt_pk_bf16_f32 v{P+k}, v{lo}, v{hi}")
        a(f"ds_write_b128 v4, v[{P}:{P+3}] offset:{512*(7-b)}")
    d = lambda i: D + i
    for bb in range(4):
        a(f"v_cndmask_b32 v{80+bb}, v{d(3+2*bb)}, v{d(4+2*bb)}, vcc")
    a("s_mov_b32 exec_lo, -1")
    a("s_mov_b32 exec_hi, 0")
    blk(0, [(d(7), d(6)), (d(5), d(4)), (d(3), d(2)), (d(1), d(0))], 64)
    blk(1, [(d(12), d(11)), (d(10), d(10)), (d(10), d(9)), (d(8), d(8))], 68)
    blk(2, [(d(15), d(15)), (d(14), d(14)), (d(14), d(13)), (d(13), d(13))], 72)
    a("s_mov_b32 exec_lo, 0")
    a("s_mov_b32 exec_hi, -1")
    blk(3, [(d(2), d(2)), (d(1), d(1)), (d(1), d(0)), (d(0), d(0))], 64 + 20)
    for bb in range(4):
        L, H = d(3 + 2 * bb), d(4 + 2 * bb)
        blk(4 + bb, [(H, H), (H, 80 + bb), (L, L), (L, L)], 88 + 4 * bb)
    a("s_mov_b64 exec, -1")
    a(f"""
    v_mov_b32 v64, 0
    v_mov_b32 v65, 0
    v_mov_b32 v66, 0
    v_mov_b32 v67, 0
    s_mul_i32 s4, s{sCH}, {KCH}
    s_add_u32 s4, s4, {KC}
    v_lshlrev_b32 v4, 4, v1
    v_add_u32 v5, 4096, v4
    v_cmp_gt_u32 vcc, 2, v1
    v_cndmask_b32 v4, v5, v4, vcc
    v_add_u32 v4, s4, v4
    s_mov_b64 exec, 0xfffff
    ds_write_b128 v4, v[64:67]
    s_mov_b64 exec, -1
    s_waitcnt lgkmcnt(0)
    """)
    a.label("L_kg_b")
    a("s_barrier")
    stamp(a, "copy0")
    a(f"""
    s_mul_i32 s4, s{sCH}, {KCH}
    s_lshl_b32 s5, s{sMH}, 10
    s_add_u32 s4, s4, s5
    s_add_u32 s4, s4, {KC}
    v_lshlrev_b32 v4, 4, v1
    v_add_u32 v4, s4, v4
    """)
    for ps in range(3):
        Wd = 64 + 24 * ps
        if ps == 2:
            a(f"s_cmp_eq_u32 s{sMH}, 0")
            a("s_cbranch_scc0 L_kg_c")
            a("s_mov_b64 exec, 0xfffff")
        a(f"ds_read_b128 v[{Wd}:{Wd+3}], v4 offset:{ps*2048}")
        a(f"ds_read_b128 v[{Wd+4}:{Wd+7}], v4 offset:{ps*2048+16}")
        a("s_waitcnt lgkmcnt(0)")
        for k in range(4):
            a(f"v_alignbit_b32 v{Wd+8+k}, v{Wd+k+1}, v{Wd+k}, 16")
            a(f"v_mov_b32 v{Wd+12+k}, v{Wd+k+1}")
            a(f"v_alignbit_b32 v{Wd+16+k}, v{Wd+k+2}, v{Wd+k+1}, 16")
        for c in range(3):
            a(f"ds_write_b128 v4, v[{Wd+8+4*c}:{Wd+8+4*c+3}] offset:{ps*2048 + (c+1)*KCS}")
        if ps == 2:
            a("s_mov_b64 exec, -1")
            a.label("L_kg_c")

def ssm_role(a, K):
    S_TAG = K.S_TAG
    a(f"""
    s_lshl_b32 s3, s{S_J}, 13
    s_lshl_b32 s4, s{S_WAVE}, 11
    s_add_u32 s3, s3, s4              ; row0*1024
    v_lshlrev_b32 v3, 4, v1
    v_add_u32 v3, s3, v3
    s_lshr_b32 s{sCH}, s{S_WAVE}, 1
    s_and_b32 s{sMH}, s{S_WAVE}, 1
    s_lshl_b32 s4, s{S_J}, 1
    s_add_u32 s4, s4, s{sCH}
    s_lshl_b32 s4, s4, 8
    s_lshl_b32 s5, s{sMH}, 7
    s_add_u32 s4, s4, s5
    v_lshlrev_b32 v12, 1, v1
    v_add_u32 v12, s4, v12
    v_mov_b32 v13, 0
    s_lshl_b32 s3, s{S_J}, 2
    s_waitcnt lgkmcnt(0)
    global_load_dwordx4 v[4:7], v3, s[{S_X}:{S_X+1}]
    global_load_dwordx4 v[8:11], v3, s[{S_X}:{S_X+1}] offset:1024
    global_load_dword v{EPV}, v13, s[{S_WS}:{S_WS+1}] sc1
    global_load_ushort v{PRM}, v12, s[{S_LOGA}:{S_LOGA+1}]
    global_load_ushort v{PRM+1}, v12, s[{S_AIM}:{S_AIM+1}]
    global_load_ushort v{PRM+2}, v12, s[{S_CRE}:{S_CRE+1}]
    global_load_ushort v{PRM+3}, v12, s[{S_CIM}:{S_CIM+1}]
    s_load_dword s{sDT}, s[{S_LOGDT}:{S_LOGDT+1}], s3
    s_load_dword s{sD}, s[{S_DSK}:{S_DSK+1}], s3
    s_waitcnt vmcnt(5)
    """)
    stamp(a, "xload")
    ln_part(a, K)
    stamp(a, "ln")
    a("s_waitcnt vmcnt(3)")
    K.tag_compute(a, EPV)
    kgen_tables(a)
    stamp(a, "kmfma")
    a("s_waitcnt vmcnt(0)")
    a("s_barrier")
    a(f"s_lshl_b32 s7, s{S_J}, 4")
    K.flag_store(a, 7, K.WS_FLN, "L_fln", 100)
    stamp(a, "fln")
    kgen_rest(a)
    stamp(a, "kgen_end")
    a(f"""
    v_lshrrev_b32 v8, 5, v1
    v_lshlrev_b32 v8, 7, v8
    v_and_b32 v9, 31, v1
    v_add_u32 v8, v8, v9
    s_lshl_b32 s4, s{S_WAVE}, 5
    v_add_u32 v8, s4, v8
    v_lshlrev_b32 v8, 4, v8
    v_add_u32 v208, {K.WS_FLN:#x}, v8
    global_load_dword v209, v208, s[{S_WS}:{S_WS+1}] sc1
    s_add_u32 s64, s{S_WS}, {WS_XNB:#x}
    s_addc_u32 s65, s{S_WS+1}, 0
    v_lshrrev_b32 v8, 1, v0
    v_lshlrev_b32 v8, 13, v8
    v_and_b32 v9, 1, v0
    v_lshlrev_b32 v10, 4, v9
    s_lshl_b32 s4, s{S_J}, 5
    v_add3_u32 v8, v8, v10, s4
    v_add_u32 v10, 0x100000, v8
    s_waitcnt vmcnt(0)
    """)
    K.spin_check(a, [208], [209], "L_cl")
    stamp(a, "flnok")
    a(f"""
    global_load_dwordx4 v[200:203], v8, s[64:65] sc1
    global_load_dwordx4 v[204:207], v10, s[64:65] sc1
    """)
    ssm.store_u(a)
    a("s_waitcnt lgkmcnt(0)")
    a("s_barrier")
    stamp(a, "u_done")
    ssm.conv(a)
    stamp(a, "conv_end")
    a("s_waitcnt vmcnt(0)")
    a("s_barrier")
    a(f"s_lshl_b32 s7, s{S_J}, 4")
    K.flag_store(a, 7, K.WS_FY, "L_fy", 100)
    stamp(a, "fy")
    a(f"""
    s_cmp_eq_u32 s{S_J}, 0
    s_cbranch_scc0 L_done
    v_lshlrev_b32 v208, 4, v0
    v_add_u32 v208, {K.WS_F1:#x}, v208
    global_load_dword v209, v208, s[{S_WS}:{S_WS+1}] sc1
    s_waitcnt vmcnt(0)
    """)
    K.spin_check(a, [208], [209], "L_ce")
    a(f"""
    s_barrier
    s_cmp_eq_u32 s{S_WAVE}, 0
    s_cbranch_scc0 L_done
    v_add_u32 v209, 1, v{EPV}
    v_mov_b32 v208, 0
    s_mov_b64 exec, 1
    global_store_dword v208, v209, s[{S_WS}:{S_WS+1}] sc1
    s_mov_b64 exec, -1
    """)
```

```python
import sys, os
sys.path.insert(0, os.path.dirname(__file__))
import gen
from gen import *
import ssm2

WS_F1, WS_FLN, WS_FY = 0x1000, 0x2000, 0x3000
WS_P = 0x300000
S_RB, S_CB, S_TAG, S_RT, S_CT = 47, 48, 49, 50, 51
SPIN = 20000
SENT = -1

class VQ:
    def __init__(self): self.q = []
    def add(self, tag, counted=True): self.q.append((tag, counted))
    def after(self, tags):
        last = max(i for i, (t, c) in enumerate(self.q) if t in tags)
        return sum(1 for (t, c) in self.q[last+1:] if c)

def epoch_issue(a, vdst, vtmp):
    a(f"v_mov_b32 v{vtmp}, 0")
    a(f"global_load_dword v{vdst}, v{vtmp}, s[{S_WS}:{S_WS+1}] sc1")

def tag_compute(a, vsrc):
    a(f"v_readfirstlane_b32 s{S_TAG}, v{vsrc}")
    a(f"s_mul_i32 s{S_TAG}, s{S_TAG}, 0x9E3779B1")
    a(f"s_add_u32 s{S_TAG}, s{S_TAG}, 0x7F4A7C15")

def flag_store(a, off_sreg, base, lab, vt):
    a(f"s_cmp_eq_u32 s{S_WAVE}, 0")
    a(f"s_cbranch_scc0 {lab}")
    a(f"s_add_u32 s3, s{off_sreg}, {base:#x}")
    a(f"v_mov_b32 v{vt}, s3")
    a(f"v_mov_b32 v{vt+1}, s{S_TAG}")
    a("s_mov_b64 exec, 1")
    a(f"global_store_dword v{vt}, v{vt+1}, s[{S_WS}:{S_WS+1}] sc1")
    a("s_mov_b64 exec, -1")
    a.label(lab)

def spin_check(a, vaddrs, vvals, lab):
    def cmp():
        if len(vvals) == 1:
            a(f"v_cmp_ne_u32 vcc, s{S_TAG}, v{vvals[0]}")
        else:
            a(f"v_cmp_ne_u32 vcc, s{S_TAG}, v{vvals[0]}")
            for v in vvals[1:]:
                a(f"v_cmp_ne_u32 s[4:5], s{S_TAG}, v{v}")
                a(f"s_or_b64 vcc, vcc, s[4:5]")
    cmp()
    a(f"s_cbranch_vccz {lab}_ok")
    a(f"s_mov_b32 s6, 0")
    a.label(f"{lab}_spin")
    a("s_sleep 2")
    for va, vv in zip(vaddrs, vvals):
        a(f"global_load_dword v{vv}, v{va}, s[{S_WS}:{S_WS+1}] sc1")
    a(f"s_add_u32 s6, s6, 1")
    a("s_waitcnt vmcnt(0)")
    cmp()
    a(f"s_cmp_ge_u32 s6, {SPIN}")
    a(f"s_cbranch_scc1 {lab}_ok")
    a(f"s_cbranch_vccnz {lab}_spin")
    a.label(f"{lab}_ok")

XL = 49152
def g1(a, q):
    SRDX, SRDW = 52, 56
    sWM, sWN, sXoff, sWoff, sMX, sMW = 60, 61, 62, 63, 64, 65
    sST, sH = 66, 68
    sCS, sFT0, sPb = 10, 11, 12
    vAad = [4, 5, 6]; vBad = [7, 8, 9, 10]; vXo = [11, 12, 13, 14]; vWo = [15, 16, 17]
    vST = [18, 20]; vFl, vFv, vHa, vEp = 22, 23, 24, 25
    vT = 26
    AF = [32, 44]; BF = [56, 88]; SEL = 120; ONES = 124; CD = 128; PF = 128
    CSV = [56, 72, 140]
    ACC = 160
    def acc(j, jn): return ACC + (j * 2 + jn) * 16
    a(f"""
    s_and_b32 s3, s{S_J}, 7
    s_lshr_b32 s4, s{S_J}, 3
    s_and_b32 s5, s3, 1
    s_lshl_b32 s5, s5, 3
    s_and_b32 s6, s4, 7
    s_add_u32 s{S_RB}, s5, s6
    s_lshr_b32 s5, s3, 1
    s_lshl_b32 s5, s5, 2
    s_lshr_b32 s6, s4, 3
    s_add_u32 s{S_CB}, s5, s6
    s_lshl_b32 s3, s3, 2
    s_lshr_b32 s5, s4, 3
    s_add_u32 s{S_RT}, s3, s5
    s_and_b32 s{S_CT}, s4, 7
    s_and_b32 s{sWM}, s{S_WAVE}, 1
    s_lshr_b32 s{sWN}, s{S_WAVE}, 1
    s_setprio 3
    """)
    a(f"""
    v_lshrrev_b32 v{vT}, 3, v1             ; r
    v_and_b32 v{vT+1}, 7, v1               ; p
    v_lshrrev_b32 v{vT+2}, 1, v{vT}        ; r>>1
    v_xor_b32 v{vT+3}, v{vT+1}, v{vT+2}    ; p ^ (r>>1)
    v_lshlrev_b32 v{vT+4}, 10, v{vT}       ; r*1024
    s_lshl_b32 s3, s{S_WAVE}, 15           ; w*4*8192
    v_add_u32 v{vT+4}, s3, v{vT+4}
    """)
    for ii in range(4):
        a(f"v_xor_b32 v{vT+5}, {4*(ii&1)}, v{vT+3}")
        a(f"v_lshl_add_u32 v{vXo[ii]}, v{vT+5}, 4, v{vT+4}")
        if ii > 0: a(f"v_add_u32 v{vXo[ii]}, {ii*8192}, v{vXo[ii]}")
    a(f"s_lshl_b32 s3, s{sWM}, 1")
    a(f"s_mul_i32 s4, s{sWN}, {16*2752}")
    for i in range(3):
        a(f"""
        v_add_u32 v{vT}, {64*i}, v1
        v_mul_u32_u24 v{vT+1}, 0x5556, v{vT}
        v_lshrrev_b32 v{vT+1}, 18, v{vT+1}      ; row = u/12
        v_mul_u32_u24 v{vT+2}, 12, v{vT+1}
        v_sub_u32 v{vT+2}, v{vT}, v{vT+2}       ; pos
        v_xor_b32 v{vT+2}, s3, v{vT+2}
        v_lshlrev_b32 v{vT+2}, 4, v{vT+2}
        v_mul_u32_u24 v{vT+1}, 2752, v{vT+1}
        v_add3_u32 v{vWo[i]}, v{vT+1}, v{vT+2}, s4
        """)
    a(f"""
    s_and_b32 s5, s{S_RB}, 7                    ; rot
    s_lshl_b32 s{sXoff}, s5, 7
    s_mul_i32 s{sWoff}, s5, {64*2752}
    s_lshl_b32 s{sMX}, s{S_WAVE}, 12
    s_add_u32 s{sMX}, s{sMX}, {XL}
    s_mul_i32 s{sMW}, s{sWN}, 6144
    s_mul_i32 s3, s{sWM}, 3072
    s_add_u32 s{sMW}, s{sMW}, s3
    s_waitcnt lgkmcnt(0)
    s_lshl_b32 s3, s{S_RB}, 17
    s_add_u32 s{SRDX}, s{S_X}, s3
    s_addc_u32 s{SRDX+1}, s{S_X+1}, 0
    s_and_b32 s{SRDX+1}, s{SRDX+1}, 0xffff
    s_mov_b32 s{SRDX+2}, 0x20000
    s_mov_b32 s{SRDX+3}, 0x20000
    s_cmp_eq_u32 s{sWM}, 0
    s_cselect_b32 s{SRDW}, s{S_WG}, s{S_WU}
    s_cselect_b32 s{SRDW+1}, s{S_WG+1}, s{S_WU+1}
    s_mul_i32 s3, s{S_CB}, 192
    s_add_u32 s{SRDW}, s{SRDW}, s3
    s_addc_u32 s{SRDW+1}, s{SRDW+1}, 0
    s_and_b32 s{SRDW+1}, s{SRDW+1}, 0xffff
    s_sub_u32 s{SRDW+2}, {512*2752}, s3
    s_mov_b32 s{SRDW+3}, 0x20000
    s_cmp_ge_u32 s{S_CB}, 15
    s_cbranch_scc1 L_idle
    """)
    def issue_list(stage):
        st = stage + 3; L = []
        if st < 16:
            for i in range(3):
                t = f"s_add_u32 m0, s{sMW}, {(st % 4) * 12288 + i * 1024}\nbuffer_load_dwordx4 v{vWo[i]}, s[{SRDW}:{SRDW+3}], s{sWoff} offen lds"
                if i == 2:
                    t += f"\ns_add_u32 s{sWoff}, s{sWoff}, {32*2752}\ns_cmp_ge_u32 s{sWoff}, {512*2752}\ns_cselect_b32 s3, {512*2752}, 0\ns_sub_u32 s{sWoff}, s{sWoff}, s3"
                L.append((t, ("W", st)))
        if stage % 2 != 0 and st // 2 < 8:
            c = st // 2
            for ii in range(4):
                t = f"s_add_u32 m0, s{sMX}, {(c % 2) * 16384 + ii * 1024}\nbuffer_load_dwordx4 v{vXo[ii]}, s[{SRDX}:{SRDX+3}], s{sXoff} offen lds"
                if ii == 3: t += f"\ns_add_u32 s{sXoff}, s{sXoff}, 128\ns_and_b32 s{sXoff}, s{sXoff}, 1023"
                L.append((t, ("X", c)))
        return L
    L3, L2, L1 = issue_list(-3), issue_list(-2), issue_list(-1)
    for t, tag in L3 + L2 + L1:
        a(t); q.add(tag)
    epoch_issue(a, vEp, vT); q.add("E")
    a(f"""
    s_and_b32 s3, s{S_CB}, 3
    s_lshl_b32 s3, s3, 15
    v_lshrrev_b32 v{vT}, 3, v0
    v_lshlrev_b32 v{vT}, 10, v{vT}
    v_and_b32 v{vT+1}, 7, v0
    v_lshl_add_u32 v{vT}, v{vT+1}, 7, v{vT}
    buffer_load_dword v2, v{vT}, s[{SRDX}:{SRDX+3}], s3 offen
    """)
    q.add("touch")
    a(f"""
    s_add_u32 s{sH}, s{S_WS}, {WS_H:#x}
    s_addc_u32 s{sH+1}, s{S_WS+1}, 0
    s_lshl_b32 s3, s{S_RB}, 2
    s_lshl_b32 s4, s{sWN}, 1
    s_add_u32 s3, s3, s4
    s_mul_i32 s3, s3, 86
    s_mul_i32 s4, s{S_CB}, 6
    s_mul_i32 s5, s{sWM}, 3
    s_add_u32 s{sFT0}, s4, s5          ; ft0
    s_add_u32 s3, s3, s{sFT0}
    s_lshl_b32 s3, s3, 10
    v_lshlrev_b32 v{vHa}, 4, v1
    v_add_u32 v{vHa}, s3, v{vHa}
    v_mov_b32 v{CD}, -1
    v_mov_b32 v{CD+1}, -1
    v_mov_b32 v{CD+2}, -1
    v_mov_b32 v{CD+3}, -1
    """)
    for j in range(3):
        a(f"s_add_u32 s5, s{sFT0}, {j}")
        a(f"s_cmp_ge_u32 s5, 86")
        a(f"s_cbranch_scc1 L_clr{j}")
        for jn in range(2):
            off = jn * 86 * 1024 + j * 1024
            a(f"v_add_u32 v{vT+(jn&1)}, {off}, v{vHa}")
            a(f"global_store_dwordx4 v{vT+(jn&1)}, v[{CD}:{CD+3}], s[{sH}:{sH+1}] sc1")
        a.label(f"L_clr{j}")
    q.add("early", False)
    a(f"""
    v_bfe_u32 v{vT}, v1, 4, 1              ; mat
    v_lshrrev_b32 v{vT+1}, 5, v1           ; hh
    v_bfe_u32 v{vT+2}, v1, 2, 2            ; r
    v_lshl_add_u32 v{vT+2}, v{vT+1}, 3, v{vT+2}   ; 8hh + r
    v_mul_u32_u24 v{vT+2}, 192, v{vT+2}
    v_mul_u32_u24 v{vT+3}, 3072, v{vT}
    v_add_u32 v{vT+2}, v{vT+2}, v{vT+3}
    v_bfe_u32 v{vT+3}, v1, 1, 1            ; c>>1
    v_lshlrev_b32 v{vT+3}, 4, v{vT+3}
    v_and_b32 v{vT+4}, 1, v1
    v_lshlrev_b32 v{vT+4}, 3, v{vT+4}
    v_add3_u32 v{vT+2}, v{vT+2}, v{vT+3}, v{vT+4}
    s_mul_i32 s3, s{sWM}, 3
    """)
    for j in range(3):
        a(f"""
        s_add_u32 s4, s3, {j}
        v_xor_b32 v{vT+3}, s4, v{vT}
        v_lshl_add_u32 v{vAad[j]}, v{vT+3}, 5, v{vT+2}
        """)
    a(f"""
    v_and_b32 v{vT}, 31, v1
    v_bfe_u32 v{vT+2}, v{vT}, 1, 3
    s_lshl_b32 s3, s{sWN}, 13
    s_add_u32 s3, s3, {XL}
    v_lshlrev_b32 v{vT+3}, 7, v{vT}
    v_add_u32 v{vT+3}, s3, v{vT+3}
    """)
    for ks in range(4):
        a(f"""
        v_add_u32 v{vT+4}, {2*ks}, v{vT+1}
        v_xor_b32 v{vT+4}, v{vT+4}, v{vT+2}
        v_lshl_add_u32 v{vBad[ks]}, v{vT+4}, 4, v{vT+3}
        """)
    a(f"""
    v_lshrrev_b32 v{vT}, 4, v1
    v_xor_b32 v{vT}, v{vT}, v1
    v_and_b32 v{vT}, 1, v{vT}
    v_cmp_eq_u32 vcc, 0, v{vT}
    v_mov_b32 v{vT}, s{S_ONES}
    v_cndmask_b32 v{SEL}, 0, v{vT}, vcc
    v_mov_b32 v{SEL+1}, v{SEL}
    v_mov_b32 v{SEL+2}, v{SEL}
    v_mov_b32 v{SEL+3}, v{SEL}
    v_mov_b32 v{ONES}, s{S_ONES}
    v_mov_b32 v{ONES+1}, s{S_ONES}
    v_mov_b32 v{ONES+2}, s{S_ONES}
    v_mov_b32 v{ONES+3}, s{S_ONES}
    s_lshr_b32 s3, s{S_RB}, 3
    s_cmp_eq_u32 s{sWN}, 0
    s_cselect_b32 s{sCS}, s3, 2
    s_add_u32 s{sPb}, s{S_WS}, {WS_P:#x}
    s_addc_u32 s{sPb+1}, s{S_WS+1}, 0
    s_lshl_b32 s3, s{S_CB}, 4              ; cb*16
    s_add_u32 s3, s3, {WS_F1:#x}
    v_and_b32 v{vT}, 15, v1
    v_lshl_add_u32 v{vFl}, v{vT}, 8, s3    ; F1[(l&15)*16 + cb]
    s_lshl_b32 s3, s{S_RB}, 8
    s_add_u32 s3, s3, {WS_FLN:#x}
    v_lshl_add_u32 v{vT+1}, v{vT}, 4, s3
    s_lshr_b32 s3, s{S_RT}, 1
    s_lshl_b32 s3, s3, 8
    s_add_u32 s3, s3, {WS_F1:#x}
    v_lshl_add_u32 v{vT+2}, v{vT}, 4, s3   ; F1[rbG2*16 + i]
    v_lshrrev_b32 v{vT+3}, 4, v1
    v_cmp_eq_u32 vcc, 1, v{vT+3}
    v_cndmask_b32 v{vFl}, v{vFl}, v{vT+1}, vcc
    v_cmp_eq_u32 vcc, 2, v{vT+3}
    v_cndmask_b32 v{vFl}, v{vFl}, v{vT+2}, vcc
    """)
    def a_reads(t):
        st = t // 2; A = AF[t % 2]; base = (st % 4) * 12288 + (t % 2) * 6144; L = []
        for j in range(3):
            L.append(f"ds_read_b64_tr_b16 v[{A+4*j}:{A+4*j+1}], v{vAad[j]} offset:{base}")
            L.append(f"ds_read_b64_tr_b16 v[{A+4*j+2}:{A+4*j+3}], v{vAad[j]} offset:{base+768}")
        return L
    def b_reads(c, kss):
        Bb = BF[c % 2]; L = []
        for ks in kss:
            for jn in range(2):
                L.append(f"ds_read_b128 v[{Bb+8*ks+4*jn}:{Bb+8*ks+4*jn+3}], v{vBad[ks]} offset:{(c%2)*16384 + jn*4096}")
        return L
    def xbar(st):
        need = [("W", st)] + ([("X", st // 2)] if st % 2 == 0 else [])
        if st == FLAG_ST: need.append("early")
        a(f"s_waitcnt vmcnt({q.after(need)})")
        a("s_barrier")
    FLAG_ST = 4
    POLL_ST = 10
    CHK_ST = 12
    xbar(0)
    stamp(a, "x0")
    pend = []
    pend += issue_list(0)
    for r in b_reads(0, [0]) + a_reads(0): a(r)
    for t in range(32):
        fill = []
        if t + 1 < 32:
            rd = a_reads(t + 1)
            if (t + 1) % 4 == 0: rd = rd + b_reads((t + 1) // 4, [0])
            if t % 4 == 0: rd = rd + b_reads(t // 4, [1, 2, 3])
            if t % 4 == 0: rd = b_reads(t // 4, [1]) + a_reads(t + 1) + b_reads(t // 4, [2, 3])
            fill += [(r, None) for r in rd]
        a("s_waitcnt lgkmcnt(0)")
        A = AF[t % 2]; B = BF[(t // 4) % 2] + (t % 4) * 8
        k = 0
        for j in range(3):
            for jn in range(2):
                d = acc(j, jn)
                c = "0" if t == 0 else f"v[{d}:{d+15}]"
                a(f"v_mfma_f32_32x32x16_bf16 v[{d}:{d+15}], v[{A+4*j}:{A+4*j+3}], v[{B+4*jn}:{B+4*jn+3}], {c}")
                if k == 0 and t % 2 == 1:
                    st = (t + 1) // 2
                    if st < 16:
                        xbar(st)
                        if st in (8, 12): stamp(a, f"x{st}")
                        pend += issue_list(st)
                        if st == FLAG_ST:
                            tag_compute(a, vEp)
                            a(f"s_lshl_b32 s7, s{S_RB}, 4")
                            a(f"s_add_u32 s7, s7, s{S_CB}")
                            a(f"s_lshl_b32 s7, s7, 4")
                            flag_store(a, 7, WS_F1, "L_f1", vT)
                        if st == POLL_ST:
                            pend.insert(0, (f"global_load_dword v{vFv}, v{vFl}, s[{S_WS}:{S_WS+1}] sc1", "poll"))
                        if st == CHK_ST:
                            a(f"s_waitcnt vmcnt({q.after(['poll'])})")
                            spin_check(a, [vFl], [vFv], "L_c1")
                            s = f"""s_add_u32 s{sST}, s{S_WS}, {WS_STATS:#x}
                            s_addc_u32 s{sST+1}, s{S_WS+1}, 0
                            s_lshl_b32 s3, s{S_RB}, 7
                            s_lshl_b32 s4, s{sWN}, 6
                            s_add_u32 s3, s3, s4
                            v_and_b32 v{vT}, 31, v1
                            v_add_u32 v{vT+4}, s3, v{vT}
                            v_lshlrev_b32 v{vT+4}, 3, v{vT+4}
                            global_load_dwordx2 v[{vST[0]}:{vST[0]+1}], v{vT+4}, s[{sST}:{sST+1}] sc1"""
                            pend.insert(0, (s, "stats"))
                            pend.insert(1, (f"global_load_dwordx2 v[{vST[1]}:{vST[1]+1}], v{vT+4}, s[{sST}:{sST+1}] offset:256 sc1", "stats"))
                            s = f"""s_lshl_b32 s3, s{sFT0}, 10
                            v_lshlrev_b32 v{vT+5}, 5, v{vT}
                            v_lshrrev_b32 v{vT+3}, 5, v1
                            v_lshl_add_u32 v{vT+5}, v{vT+3}, 4, v{vT+5}
                            v_add_u32 v{vT+5}, s3, v{vT+5}
                            global_load_dwordx4 v[{PF}:{PF+3}], v{vT+5}, s[{sPb}:{sPb+1}] sc1"""
                            pend.insert(2, (s, "pf"))
                            pend.insert(3, (f"global_load_dwordx4 v[{PF+4}:{PF+7}], v{vT+5}, s[{sPb}:{sPb+1}] offset:1024 sc1", "pf"))
                            pend.insert(4, (f"global_load_dwordx4 v[{PF+8}:{PF+11}], v{vT+5}, s[{sPb}:{sPb+1}] offset:2048 sc1", "pf"))
                    else:
                        a("s_barrier")
                nf = 2
                for _ in range(nf):
                    if fill: a(fill.pop(0)[0])
                    elif pend and (k >= 2 or t % 2 == 0):
                        tx, tg = pend.pop(0); a(tx); q.add(tg); break
                k += 1
        while fill: a(fill.pop(0)[0])
        if t % 2 == 0 and pend and len(pend) > 3:
            pass
        if t % 2 == 0:
            while pend:
                tx, tg = pend.pop(0); a(tx); q.add(tg)
        if t < 4:
            s_ = t // 2
            a(f"s_cmp_eq_u32 s{sCS}, {s_}")
            a(f"s_cbranch_scc0 L_cs{t}")
            for j in range(3):
                c = "0" if t % 2 == 0 else f"v[{CD+4*j}:{CD+4*j+3}]"
                a(f"v_mfma_f32_16x16x32_bf16 v[{CD+4*j}:{CD+4*j+3}], v[{SEL}:{SEL+3}], v[{A+4*j}:{A+4*j+3}], {c}")
            a.label(f"L_cs{t}")
        if t == 4:
            a(f"s_cmp_ge_u32 s{sCS}, 2")
            a(f"s_cbranch_scc1 L_cs4")
            a(f"""
            s_mov_b64 vcc, 0xffff
            s_lshl_b32 s3, s{sFT0}, 10
            s_lshl_b32 s4, s{S_RB}, 1
            s_add_u32 s3, s3, s4
            v_and_b32 v{vT}, 31, v1
            v_lshl_add_u32 v{vT}, v{vT}, 5, s3
            """)
            for j in range(3):
                a(f"v_cndmask_b32 v{vT+1+j}, v{CD+4*j+1}, v{CD+4*j}, vcc")
            for j in range(3):
                a(f"v_cvt_pk_bf16_f32 v{vT+1+j}, v{vT+1+j}, v{vT+1+j}")
            a("s_mov_b64 exec, 0xffffffff")
            for j in range(3):
                a(f"global_store_short v{vT}, v{vT+1+j}, s[{sPb}:{sPb+1}] offset:{j*1024} sc1")
            a("s_mov_b64 exec, -1")
            a.label("L_cs4")
            q.add("early", False)
    stamp(a, "g1loop")
    a(f"s_waitcnt vmcnt({q.after(['pf', 'stats'])})")
    for j in range(3):
        a(f"v_mfma_f32_32x32x16_bf16 v[{CSV[j]}:{CSV[j]+15}], v[{PF+4*j}:{PF+4*j+3}], v[{ONES}:{ONES+3}], 0")
    for jn in range(2):
        a(f"v_mul_f32 v{vT+2+2*jn}, v{vST[jn]+1}, v{vST[jn]+1}")
    for j in range(3):
        a(f"s_add_u32 s5, s{sFT0}, {j}")
        a(f"s_cmp_ge_u32 s5, 86")
        a(f"s_cbranch_scc1 L_g1_skip{j}")
        for jn in range(2):
            d = acc(j, jn); cs = CSV[j]; st = vST[jn]
            for i in range(0, 16, 2):
                a(f"v_pk_fma_f32 v[{d+i}:{d+i+1}], v[{cs+i}:{cs+i+1}], v[{st}:{st+1}], v[{d+i}:{d+i+1}] op_sel_hi:[1,0,1] neg_lo:[0,1,0] neg_hi:[0,1,0]")
            for i in range(0, 8, 2):
                a(f"v_pk_mul_f32 v[{d+i}:{d+i+1}], v[{d+i}:{d+i+1}], v[{d+i+8}:{d+i+9}]")
            r2 = vT + 2 + 2 * jn
            for i in range(0, 8, 2):
                a(f"v_pk_mul_f32 v[{d+i}:{d+i+1}], v[{d+i}:{d+i+1}], v[{r2}:{r2+1}] op_sel_hi:[1,0]")
            for i in range(4):
                a(f"v_cvt_pk_bf16_f32 v{d+8+i}, v{d+2*i}, v{d+2*i+1}")
            off = jn * 86 * 1024 + j * 1024
            a(f"v_add_u32 v{vT+jn}, {off}, v{vHa}")
            a(f"global_store_dwordx4 v{vT+jn}, v[{d+8}:{d+11}], s[{sH}:{sH+1}] sc1")
        a.label(f"L_g1_skip{j}")
    q.add("hst", False)
    stamp(a, "g1end")

def idle_path(a):
    a.label("L_idle")
    epoch_issue(a, 25, 26)
    a("s_waitcnt vmcnt(0)")
    a("s_barrier")
    tag_compute(a, 25)
    a(f"s_lshl_b32 s7, s{S_RB}, 4")
    a(f"s_add_u32 s7, s7, s{S_CB}")
    a(f"s_lshl_b32 s7, s7, 4")
    flag_store(a, 7, WS_F1, "L_f1i", 26)
    a(f"""
    s_lshr_b32 s3, s{S_RT}, 1
    s_lshl_b32 s3, s3, 8
    s_add_u32 s3, s3, {WS_F1:#x}
    v_and_b32 v26, 15, v1
    v_lshl_add_u32 v22, v26, 4, s3
    global_load_dword v23, v22, s[{S_WS}:{S_WS+1}] sc1
    s_waitcnt vmcnt(0)
    """)
    spin_check(a, [22], [23], "L_ci")

NS = 22; NSL = 10; NWR = 12; HD = 9; WREG = 20480
def g2(a, q):
    SRDW, SRDH = 52, 56
    sWoff, sH0, sLB, sAO, sHoff = 60, 61, 62, 64, 63
    vWo = [4, 5]; vHo = [6, 7]; vA = [8, 9]; vXo = 10; vTw = 11; vT = 12
    vFy, vFyv = 18, 19
    HR = 24; WR = 96; ACC = 192
    XD = WR + 16; AOD = WR + 24
    H_AT = int(os.environ.get("H_AT", "11"))
    a(f"""
    s_lshl_b32 s3, s{S_CT}, 7
    s_add_u32 s{SRDW}, s{S_WD}, s3
    s_addc_u32 s{SRDW+1}, s{S_WD+1}, 0
    s_and_b32 s{SRDW+1}, s{SRDW+1}, 0xffff
    s_sub_u32 s{SRDW+2}, {1376*1024}, s3
    s_mov_b32 s{SRDW+3}, 0x20000
    s_mul_i32 s3, s{S_RT}, {2*86*1024}
    s_add_u32 s3, s3, {WS_H:#x}
    s_add_u32 s{SRDH}, s{S_WS}, s3
    s_addc_u32 s{SRDH+1}, s{S_WS+1}, 0
    s_and_b32 s{SRDH+1}, s{SRDH+1}, 0xffff
    s_mov_b32 s{SRDH+2}, {2*86*1024}
    s_mov_b32 s{SRDH+3}, 0x20000
    s_mul_i32 s3, s{S_WAVE}, 22
    s_cmp_ge_u32 s{S_WAVE}, 2
    s_subb_u32 s3, s3, 0
    s_cmp_ge_u32 s{S_WAVE}, 3
    s_subb_u32 s3, s3, 0
    s_lshl_b32 s{sWoff}, s3, 14
    s_lshl_b32 s{sH0}, s3, 10
    s_mul_i32 s{sLB}, s{S_WAVE}, {WREG}
    v_lshrrev_b32 v{vT}, 3, v1
    v_and_b32 v{vT+1}, 7, v1
    v_bfe_u32 v{vT+2}, v1, 4, 1
    v_lshlrev_b32 v{vT+2}, 2, v{vT+2}
    v_xor_b32 v{vT+1}, v{vT+1}, v{vT+2}
    v_lshlrev_b32 v{vT+1}, 4, v{vT+1}
    v_lshl_add_u32 v{vWo[0]}, v{vT}, 10, v{vT+1}
    v_add_u32 v{vWo[1]}, 8192, v{vWo[0]}
    """)
    def wdma(st):
        for ii in range(2):
            a(f"s_add_u32 m0, s{sLB}, {(st % NSL) * 2048 + ii * 1024}")
            a(f"buffer_load_dwordx4 v{vWo[ii]}, s[{SRDW}:{SRDW+3}], s{sWoff} offen lds")
            q.add(("W2", st))
        a(f"s_add_u32 s{sWoff}, s{sWoff}, 16384")
    for st in range(NSL): wdma(st)
    stamp(a, "w2iss")
    a(f"""
    v_lshlrev_b32 v{vHo[0]}, 4, v1
    v_add_u32 v{vHo[1]}, {86*1024}, v{vHo[0]}
    v_bfe_u32 v{vT}, v1, 2, 2              ; r
    v_lshrrev_b32 v{vT+1}, 5, v1           ; hh
    v_lshl_add_u32 v{vT+1}, v{vT+1}, 2, v{vT}
    v_lshlrev_b32 v{vT+1}, 7, v{vT+1}
    v_bfe_u32 v{vT+2}, v1, 4, 1            ; mhalf
    v_lshlrev_b32 v{vT+2}, 5, v{vT+2}
    v_and_b32 v{vT+3}, 3, v1
    v_lshlrev_b32 v{vT+3}, 3, v{vT+3}
    v_add3_u32 v{vT+1}, v{vT+1}, v{vT+2}, v{vT+3}
    v_add_u32 v{vT+1}, s{sLB}, v{vT+1}
    v_bfe_u32 v{vT+2}, v1, 3, 1
    v_lshlrev_b32 v{vT+2}, 6, v{vT+2}
    v_add_u32 v{vA[0]}, v{vT+1}, v{vT+2}
    v_xor_b32 v{vT+2}, 64, v{vT+2}
    v_add_u32 v{vA[1]}, v{vT+1}, v{vT+2}
    s_lshl_b32 s3, s{S_CT}, 9
    s_add_u32 s3, s3, {WS_FY:#x}
    v_and_b32 v{vT}, 31, v1
    v_lshl_add_u32 v{vFy}, v{vT}, 4, s3
    v_and_b32 v{vT}, 15, v1
    v_lshrrev_b32 v{vT+1}, 4, v1
    s_lshl_b32 s3, s{S_RT}, 6
    s_lshl_b32 s4, s{S_WAVE}, 4
    s_add_u32 s3, s3, s4
    s_lshl_b32 s3, s3, 10
    s_lshl_b32 s4, s{S_CT}, 7
    s_add_u32 s3, s3, s4
    v_lshlrev_b32 v{vXo}, 10, v{vT}
    v_lshl_add_u32 v{vXo}, v{vT+1}, 4, v{vXo}
    v_add_u32 v{vXo}, s3, v{vXo}
    """)
    for i in range(64):
        a(f"v_mov_b32 v{ACC+i}, 0")
    def areg(st):
        return WR + st * 8 if st < NWR else WR + (st % 2) * 8
    def wreads(st):
        A = areg(st); L = []
        for mt in range(2):
            L.append(f"ds_read_b64_tr_b16 v[{A+4*mt}:{A+4*mt+1}], v{vA[mt]} offset:{(st % NSL) * 2048}")
            L.append(f"ds_read_b64_tr_b16 v[{A+4*mt+2}:{A+4*mt+3}], v{vA[mt]} offset:{(st % NSL) * 2048 + 1024}")
        return L
    def hload(st, soff=None, track=True):
        for nt in range(2):
            r = HR + (st % HD) * 8 + nt * 4
            a(f"buffer_load_dwordx4 v[{r}:{r+3}], v{vHo[nt]}, s[{SRDH}:{SRDH+3}], s{soff if soff is not None else sHoff} offen sc1")
            if track: q.add(("H", st))
    def h_first():
        a(f"s_mov_b32 s{sHoff}, s{sH0}")
        for st in range(HD):
            hload(st); a(f"s_add_u32 s{sHoff}, s{sHoff}, 1024")
    for i in range(NWR):
        a(f"s_waitcnt vmcnt({q.after([('W2', i)])})")
        for r in wreads(i): a(r)
        a("s_waitcnt lgkmcnt(0)")
        if NSL + i < NS: wdma(NSL + i)
        if i == H_AT: h_first()
    stamp(a, "w2done")
    slow = []
    for t in range(NS):
        need = [("H", t)] + ([("W2", t + 1)] if NWR <= t + 1 < NS else [])
        a(f"s_waitcnt vmcnt({q.after(need)})")
        if t in (0, 14): stamp(a, f"h{t}")
        H = HR + (t % HD) * 8
        a.label(f"L_hchk{t}")
        a(f"v_max3_u32 v{vT}, v{H}, v{H+1}, v{H+2}")
        a(f"v_max3_u32 v{vT+1}, v{H+3}, v{H+4}, v{H+5}")
        a(f"v_max3_u32 v{vT}, v{vT}, v{H+6}, v{H+7}")
        a(f"v_max_u32 v{vT}, v{vT}, v{vT+1}")
        a(f"v_cmp_eq_u32 vcc, -1, v{vT}")
        a(f"s_cbranch_vccnz L_hslow{t}")
        a.label(f"L_hok{t}")
        slow.append(t)
        if t >= NWR: a("s_waitcnt lgkmcnt(0)")
        rd = wreads(t + 1) if NWR <= t + 1 < NS else []
        A = areg(t)
        if t == 0:
            a(f"s_cmp_ge_u32 s{S_WAVE}, 2")
            a("s_cbranch_scc1 L_g2_sk0")
        for mt in range(2):
            for nt in range(2):
                d = ACC + (mt * 2 + nt) * 16
                a(f"v_mfma_f32_32x32x16_bf16 v[{d}:{d+15}], v[{A+4*mt}:{A+4*mt+3}], v[{H+4*nt}:{H+4*nt+3}], v[{d}:{d+15}]")
                if rd: a(rd.pop(0))
        if t == 0: a.label("L_g2_sk0")
        if t + HD < NS:
            hload(t + HD); a(f"s_add_u32 s{sHoff}, s{sHoff}, 1024")
        if t == 4:
            a(f"global_load_dwordx4 v[{XD}:{XD+3}], v{vXo}, s[{S_X}:{S_X+1}]")
            a(f"global_load_dwordx4 v[{XD+4}:{XD+7}], v{vXo}, s[{S_X}:{S_X+1}] offset:64")
            q.add("x"); q.add("x")
        if t == 10:
            a(f"global_load_dword v{vFyv}, v{vFy}, s[{S_WS}:{S_WS+1}] sc1"); q.add("pfy")
        if t == 14:
            a(f"s_waitcnt vmcnt({q.after(['pfy'])})")
            spin_check(a, [vFy], [vFyv], "L_cy")
            a(f"""
            s_add_u32 s{sAO}, s{S_WS}, {WS_AO:#x}
            s_addc_u32 s{sAO+1}, s{S_WS+1}, 0
            v_lshrrev_b32 v{vT}, 3, v0
            v_and_b32 v{vT+1}, 7, v0
            s_lshl_b32 s3, s{S_CT}, 18
            s_lshl_b32 s4, s{S_RT}, 7
            s_add_u32 s3, s3, s4
            v_lshlrev_b32 v{vTw}, 12, v{vT}
            v_lshl_add_u32 v{vTw}, v{vT+1}, 4, v{vTw}
            v_add_u32 v{vTw}, s3, v{vTw}
            global_load_dwordx4 v[{AOD}:{AOD+3}], v{vTw}, s[{sAO}:{sAO+1}] sc1
            v_add_u32 v{vTw}, {32*4096}, v{vTw}
            global_load_dwordx4 v[{AOD+4}:{AOD+7}], v{vTw}, s[{sAO}:{sAO+1}] sc1
            ; T row for thread: d = t/8 (+32p) -> region (t/8 /8 = wave), idx = 8p + d%8
            v_and_b32 v{vT}, 7, v{vT}
            v_mul_u32_u24 v{vTw}, 144, v{vT}
            v_lshl_add_u32 v{vTw}, v{vT+1}, 4, v{vTw}
            s_add_u32 s3, s{sLB}, 16384
            v_add_u32 v{vTw}, s3, v{vTw}
            """)
            q.add("ao"); q.add("ao")
    stamp(a, "g2loop")
    a(f"""
    v_and_b32 v{vT}, 31, v1
    v_lshrrev_b32 v{vT+1}, 5, v1
    v_and_b32 v{vT+2}, 15, v1
    v_xor_b32 v{vT+2}, v{vT+2}, v{vT+1}
    v_lshlrev_b32 v{vT+2}, 4, v{vT+2}
    v_lshl_add_u32 v{vT+2}, v{vT}, 8, v{vT+2}
    v_add_u32 v{vT+2}, s{sLB}, v{vT+2}
    s_waitcnt vmcnt(0)
    ds_write_b128 v{vTw}, v[{AOD}:{AOD+3}]
    ds_write_b128 v{vTw}, v[{AOD+4}:{AOD+7}] offset:{8*144}
    """)
    for mt in range(2):
        for g in range(4):
            t = vT + 3 if (g & 1) else vT
            a(f"v_xor_b32 v{t}, {(8*mt + 2*g) << 4}, v{vT+2}")
            for nt in range(2):
                d = ACC + (mt * 2 + nt) * 16 + 4 * g
                a(f"ds_write_b128 v{t}, v[{d}:{d+3}] offset:{nt*8192}")
    a("s_waitcnt lgkmcnt(0)")
    a("s_barrier")
    stamp(a, "g2bar")
    P = 24; AOT = 88; E = 128
    a(f"""
    v_and_b32 v{vT}, 15, v1               ; i
    v_lshrrev_b32 v{vT+1}, 4, v1          ; g4
    s_lshl_b32 s3, s{S_WAVE}, 4
    v_add_u32 v{vT+2}, s3, v{vT}          ; l
    v_lshlrev_b32 v{vT+2}, 8, v{vT+2}
    v_lshlrev_b32 v{vT+3}, 1, v{vT+1}
    v_xor_b32 v{vT+3}, v{vT+3}, v{vT}
    v_lshl_add_u32 v{vT+2}, v{vT+3}, 4, v{vT+2}
    v_bfe_u32 v{vT+3}, v1, 2, 2           ; r
    v_mul_u32_u24 v{vT+3}, 144, v{vT+3}
    v_mul_u32_u24 v{vT+1}, {WREG}, v{vT+1}
    v_and_b32 v{vT}, 3, v1
    v_lshlrev_b32 v{vT}, 3, v{vT}
    s_lshl_b32 s3, s{S_WAVE}, 5
    s_add_u32 s3, s3, 16384
    v_add3_u32 v{vT+3}, v{vT+3}, v{vT}, s3
    v_add_u32 v{vT+3}, v{vT+3}, v{vT+1}
    """)
    for p in range(2):
        for qq in range(2):
            a(f"ds_read_b64_tr_b16 v[{AOT+(2*p+qq)*2}:{AOT+(2*p+qq)*2+1}], v{vT+3} offset:{(8*p + 4*qq)*144}")
    for p in range(2):
        for qq in range(2):
            t = vT if (qq & 1) else vT + 1
            a(f"v_xor_b32 v{t}, {(8*p + qq) << 4}, v{vT+2}")
            for w in range(4):
                r = P + (2*p+qq)*16 + w*4
                a(f"ds_read_b128 v[{r}:{r+3}], v{t} offset:{w*WREG}")
    for p in range(2):
        for qq in range(2):
            k = 2*p + qq
            a(f"s_waitcnt lgkmcnt({min(15, 4*(3-k))})")
            r = P + k*16
            for h2 in range(2):
                a(f"v_pk_add_f32 v[{r+2*h2}:{r+2*h2+1}], v[{r+2*h2}:{r+2*h2+1}], v[{r+4+2*h2}:{r+4+2*h2+1}]")
                a(f"v_pk_add_f32 v[{r+8+2*h2}:{r+8+2*h2+1}], v[{r+8+2*h2}:{r+8+2*h2+1}], v[{r+12+2*h2}:{r+12+2*h2+1}]")
            for h2 in range(2):
                a(f"v_pk_add_f32 v[{r+2*h2}:{r+2*h2+1}], v[{r+2*h2}:{r+2*h2+1}], v[{r+8+2*h2}:{r+8+2*h2+1}]")
            e = E + k * 20
            for h2 in range(2):
                xr = XD + 4*p + 2*qq + h2; ar = AOT + 2*k + h2; e2 = e + 10*h2
                a(f"v_lshlrev_b32 v{e2+0}, 16, v{xr}")
                a(f"v_and_b32 v{e2+1}, 0xffff0000, v{xr}")
                a(f"v_lshlrev_b32 v{e2+2}, 16, v{ar}")
                a(f"v_and_b32 v{e2+3}, 0xffff0000, v{ar}")
                a(f"v_pk_add_f32 v[{e2}:{e2+1}], v[{e2}:{e2+1}], v[{e2+2}:{e2+3}]")
                a(f"v_cvt_pk_bf16_f32 v{e2+4}, v{e2}, v{e2+1}")
                a(f"v_cvt_pk_bf16_f32 v{e2+5}, v{r+2*h2}, v{r+2*h2+1}")
                a(f"v_lshlrev_b32 v{e2+6}, 16, v{e2+4}")
                a(f"v_and_b32 v{e2+7}, 0xffff0000, v{e2+4}")
                a(f"v_lshlrev_b32 v{e2+8}, 16, v{e2+5}")
                a(f"v_and_b32 v{e2+9}, 0xffff0000, v{e2+5}")
                a(f"v_pk_add_f32 v[{e2+6}:{e2+7}], v[{e2+6}:{e2+7}], v[{e2+8}:{e2+9}]")
                a(f"v_cvt_pk_bf16_f32 v{xr}, v{e2+6}, v{e2+7}")
        a(f"global_store_dwordx4 v{vXo}, v[{XD+4*p}:{XD+4*p+3}], s[{S_OUT}:{S_OUT+1}] offset:{64*p}")
    stamp(a, "g2end")
    a("s_branch L_done")
    for t in slow:
        a.label(f"L_hslow{t}")
        a("s_mov_b32 s6, 0")
        a.label(f"L_hspin{t}")
        a("s_sleep 4")
        for st in range(t, min(t + HD, NS)):
            a(f"s_add_u32 s7, s{sH0}, {st*1024}")
            hload(st, soff=7, track=False)
        a("s_add_u32 s6, s6, 1")
        a("s_waitcnt vmcnt(0)")
        H = HR + (t % HD) * 8
        a(f"v_max3_u32 v{vT}, v{H}, v{H+1}, v{H+2}")
        a(f"v_max3_u32 v{vT+1}, v{H+3}, v{H+4}, v{H+5}")
        a(f"v_max3_u32 v{vT}, v{vT}, v{H+6}, v{H+7}")
        a(f"v_max_u32 v{vT}, v{vT}, v{vT+1}")
        a(f"v_cmp_eq_u32 vcc, -1, v{vT}")
        a(f"s_cmp_ge_u32 s6, {SPIN}")
        a(f"s_cbranch_scc1 L_hok{t}")
        a(f"s_cbranch_vccnz L_hspin{t}")
        a(f"s_branch L_hok{t}")

def gemm_role(a):
    q = VQ()
    g1(a, q)
    a.label("L_g2")
    g2(a, VQ())
    idle_path(a)
    a("s_branch L_g2")

def build():
    a = Asm()
    lab = NAME + "_kernel"
    head = "; @launch grid=(512,1,1) block=(256,1,1) lds=81920\n"
    a.raw('.amdgcn_target "amdgcn-amd-amdhsa--gfx950"')
    a.raw(".text")
    kernel_header(a, lab)
    exit_if_ge(a, 512, "L_exit")
    stamp(a, "RTstart"); stamp(a, "start")
    prologue(a)
    a("s_cmp_ge_u32 s2, 256")
    a("s_cbranch_scc1 L_ssm")
    a(f"s_mov_b32 s{S_J}, s2")
    gemm_role(a)
    namesG = list(gen.ST.names); nG = gen.ST.n
    a.label("L_ssm")
    gen.ST.n = 2; gen.ST.names = gen.ST.names[:2]
    a(f"s_sub_u32 s{S_J}, s2, 256")
    ssm2.ssm_role(a, sys.modules[__name__])
    namesS = list(gen.ST.names); nS = gen.ST.n
    a.label("L_done")
    if gen.STAMPS:
        a("s_memrealtime s[100:101]")
        gen.ST.n = 16
        dump_stamps(a, 0)
        print("GEMM stamps", namesG); print("SSM stamps", namesS)
    a.label("L_exit")
    a("s_endpgm")
    return head + a.render() + '.section .rodata,"a"\n' + kernel_desc(lab)

if __name__ == "__main__":
    if os.environ.get("STAMPS"): gen.STAMPS = True
    src = build()
    out = sys.argv[1] if len(sys.argv) > 1 else f"cdna_kernels/{NAME}.s"
    open(out, "w").write(src)
    print("wrote", out, len(src), "bytes")
```

```python
import os
from gen import *
import ssm
from ssm import KC, KCS, KCH, UB, UCH, RED, TABCH, TABB, TROW, XCH, L2E_HI, INV2PI, cmul, exp_bf16, A_ROWS

LNB = XCH
S_JL = 47

def ln_part(a, K):
    X0, X1 = 4, 8
    SUM = [12, 13, 14, 15]; TMP = [16, 17, 18, 19]
    F0, F1 = 20, 28
    for k in range(4):
        for (X, sm) in ((X0, 12), (X1, 14)):
            c = "0" if k == 0 else f"v{sm}"
            a(f"v_dot2_f32_bf16 v{sm}, v{X+k}, s{S_ONES}, {c}")
            c = "0" if k == 0 else f"v{sm+1}"
            a(f"v_dot2_f32_bf16 v{sm+1}, v{X+k}, v{X+k}, {c}")
    for (X, F) in ((X0, F0), (X1, F1)):
        for k in range(4):
            a(f"v_lshlrev_b32 v{F+2*k}, 16, v{X+k}")
            a(f"v_and_b32 v{F+2*k+1}, 0xffff0000, v{X+k}")
    wave_allreduce(a, SUM, TMP)
    M = [36, 37]; RS = [38, 39]
    for r, sm in enumerate((12, 14)):
        a(f"v_mul_f32 v{sm}, 0x3b000000, v{sm}")
        a(f"v_mul_f32 v{sm+1}, 0x3b000000, v{sm+1}")
    for r, sm in enumerate((12, 14)):
        a(f"v_fma_f32 v{sm+1}, -v{sm}, v{sm}, v{sm+1}")
        a(f"v_cvt_pk_bf16_f32 v{M[r]}, v{sm}, v{sm+1}")
    for r, sm in enumerate((12, 14)):
        a(f"v_and_b32 v{sm+1}, 0xffff0000, v{M[r]}")
        a(f"v_lshlrev_b32 v{M[r]}, 16, v{M[r]}")
        a(f"v_add_f32 v{sm+1}, 0x3727c5ac, v{sm+1}")
    for r, sm in enumerate((12, 14)):
        a(f"v_cvt_pk_bf16_f32 v{sm+1}, v{sm+1}, v{sm+1}")
    for r, sm in enumerate((12, 14)):
        a(f"v_lshlrev_b32 v{sm+1}, 16, v{sm+1}")
    for r, sm in enumerate((12, 14)):
        a(f"v_sqrt_f32 v{sm+1}, v{sm+1}")
    for r, sm in enumerate((12, 14)):
        a(f"v_cvt_pk_bf16_f32 v{sm+1}, v{sm+1}, v{sm+1}")
    for r, sm in enumerate((12, 14)):
        a(f"v_lshlrev_b32 v{sm+1}, 16, v{sm+1}")
    for r, sm in enumerate((12, 14)):
        a(f"v_rcp_f32 v{RS[r]}, v{sm+1}")
    for r, (F, X) in enumerate(((F0, X0), (F1, X1))):
        for k in range(8):
            a(f"v_sub_f32 v{F+k}, v{F+k}, v{M[r]}")
        for k in range(4):
            a(f"v_cvt_pk_bf16_f32 v{X+k}, v{F+2*k}, v{F+2*k+1}")
        for k in range(4):
            a(f"v_lshlrev_b32 v{F+2*k}, 16, v{X+k}")
            a(f"v_and_b32 v{F+2*k+1}, 0xffff0000, v{X+k}")
        for k in range(8):
            a(f"v_mul_f32 v{F+k}, v{F+k}, v{RS[r]}")
        for k in range(4):
            a(f"v_cvt_pk_bf16_f32 v{X+k}, v{F+2*k}, v{F+2*k+1}")
    a(f"""
    s_mul_i32 s4, s{S_WAVE}, {2*1088}
    s_add_u32 s4, s4, {LNB}
    v_lshlrev_b32 v3, 4, v1
    v_add_u32 v3, s4, v3
    ds_write_b128 v3, v[{X0}:{X0+3}]
    ds_write_b128 v3, v[{X1}:{X1+3}] offset:1088
    s_add_u32 s52, s{S_WS}, {WS_STATS:#x}
    s_addc_u32 s53, s{S_WS+1}, 0
    v_mov_b32 v40, v{M[0]}
    v_mov_b32 v41, v{RS[0]}
    v_mov_b32 v42, v{M[1]}
    v_mov_b32 v43, v{RS[1]}
    s_lshl_b32 s4, s{S_JL}, 6
    s_lshl_b32 s5, s{S_WAVE}, 4
    s_add_u32 s4, s4, s5
    v_mov_b32 v44, s4
    s_mov_b64 exec, 1
    global_store_dwordx4 v44, v[40:43], s[52:53] sc1
    s_mov_b64 exec, -1
    v_bfe_u32 v4, v1, 2, 2            ; r
    v_mul_u32_u24 v4, 1088, v4
    v_lshrrev_b32 v5, 4, v1           ; G
    v_lshlrev_b32 v5, 5, v5           ; 16G*2
    v_and_b32 v6, 3, v1
    v_lshlrev_b32 v6, 3, v6           ; 4c*2
    v_add3_u32 v4, v4, v5, v6
    s_lshl_b32 s4, s{S_WAVE}, 8       ; 128w*2
    s_add_u32 s4, s4, {LNB}
    v_add_u32 v4, s4, v4
    s_add_u32 s52, s{S_WS}, {WS_XNB:#x}
    s_addc_u32 s53, s{S_WS+1}, 0
    s_lshl_b32 s4, s{S_JL}, 13
    s_lshl_b32 s5, s{S_WAVE}, 11      ; 128w*16
    s_add_u32 s4, s4, s5
    v_lshlrev_b32 v5, 4, v1
    v_add_u32 v5, s4, v5
    s_waitcnt lgkmcnt(0)
    s_barrier
    ds_read_b64_tr_b16 v[8:9], v4
    ds_read_b64_tr_b16 v[10:11], v4 offset:{4*1088}
    ds_read_b64_tr_b16 v[12:13], v4 offset:128
    ds_read_b64_tr_b16 v[14:15], v4 offset:{4*1088+128}
    s_waitcnt lgkmcnt(2)
    global_store_dwordx4 v5, v[8:11], s[52:53] sc1
    s_waitcnt lgkmcnt(0)
    global_store_dwordx4 v5, v[12:15], s[52:53] offset:1024 sc1
    """)

PRM = 210
EPV = 214
sCH, sMH, sDT, sD = 60, 61, 62, 63

def kgen_tables(a):
    a(f"""
    s_lshl_b32 s5, s{sCH}, 4
    s_lshr_b32 s{sDT}, s{sDT}, s5
    s_lshl_b32 s{sDT}, s{sDT}, 16
    s_lshr_b32 s{sD}, s{sD}, s5
    s_lshl_b32 s{sD}, s{sD}, 16
    v_mov_b32 v8, s{sDT}
    """)
    exp_bf16(a, 8, 9, 10)
    for i, r in enumerate((4, 5, 6, 7)): a(f"v_lshlrev_b32 v{r}, 16, v{PRM+i}")
    exp_bf16(a, 4, 9, 10)
    W1, W8, W256, W2, W4, W16 = 16, 18, 20, 22, 24, 26
    C = 12
    a(f"""
    v_mul_f32 v14, v4, v8
    v_mul_f32 v14, {L2E_HI | 0x80000000:#x}, v14       ; -Are*dt*log2e
    v_mul_f32 v15, v5, v8
    v_mul_f32 v15, {INV2PI:#x}, v15
    v_add_f32 v8, v8, v8
    v_mul_f32 v{C}, v6, v8
    v_mul_f32 v{C+1}, v7, v8
    """)
    for (W, p) in ((W1, 1.0), (W8, 8.0), (W256, 256.0)):
        if p == 1.0:
            a(f"v_exp_f32 v9, v14"); a(f"v_cos_f32 v{W}, v15"); a(f"v_sin_f32 v{W+1}, v15")
        else:
            lit = {8.0: "0x41000000", 256.0: "0x43800000"}[p]
            a(f"v_mul_f32 v10, {lit}, v14"); a(f"v_mul_f32 v11, {lit}, v15")
            a(f"v_exp_f32 v9, v10"); a(f"v_cos_f32 v{W}, v11"); a(f"v_sin_f32 v{W+1}, v11")
        a(f"v_mul_f32 v{W}, v{W}, v9"); a(f"v_mul_f32 v{W+1}, v{W+1}, v9")
    cmul(a, W2, W1, W1); cmul(a, W16, W8, W8); cmul(a, W4, W2, W2)
    a(f"""
    s_mul_i32 s4, s{sCH}, {TABCH}
    s_lshl_b32 s5, s{sMH}, 8
    s_add_u32 s4, s4, s5
    v_lshlrev_b32 v3, 2, v1
    v_add_u32 v3, s4, v3
    """)
    pk = [28, 29, 30, 31]; pki = [0]
    def emitA(kap, x):
        t = pk[pki[0] % 4]; pki[0] += 1
        a(f"v_cvt_pk_bf16_f32 v{t}, v{x}, -v{x+1}")
        a(f"ds_write_b32 v3, v{t} offset:{A_ROWS[kap]*TROW}")
    def emitB(j, x):
        t = pk[pki[0] % 4]; pki[0] += 1
        a(f"v_cvt_pk_bf16_f32 v{t}, v{x}, v{x+1}")
        a(f"ds_write_b32 v3, v{t} offset:{TABB + j*TROW}")
    E = [32, 34, 36, 38]
    a(f"v_mov_b32 v{E[0]}, 1.0"); a(f"v_mov_b32 v{E[0]+1}, 0")
    emitB(0, E[0]); emitB(1, W8)
    prev = {0: E[0], 1: W8}
    R = {0: C}
    pool = iter(range(44, 100, 2))
    plan = [(1, 0, W1), (256, 0, W256), (2, 1, W1), (512, 256, W256), (3, 2, W1), (258, 256, W2), (4, 3, W1), (768, 512, W256),
            (5, 4, W1), (260, 256, W4), (6, 5, W1), (1024, 768, W256), (7, 6, W1), (262, 258, W4), (264, 256, W8), (1280, 1024, W256),
            (516, 512, W4), (520, 512, W8), (1536, 1280, W256), (772, 768, W4), (776, 768, W8), (1792, 1536, W256),
            (1032, 1024, W8), (1288, 1280, W8), (1544, 1536, W8), (1800, 1792, W8)]
    emitA(0, C)
    j = 2; pi = 0
    while j < 32 or pi < len(plan):
        if j < 32:
            d = E[(j % 2) + 2 * ((j // 2) % 2)]
            cmul(a, d, prev[j % 2], W16)
            pend = (j, d); prev[j % 2] = d; j += 1
        else: pend = None
        outs = []
        for _ in range(1 if j < 32 else 4):
            if pi < len(plan):
                kap, src, w = plan[pi]; pi += 1
                d2 = next(pool); R[kap] = d2
                cmul(a, d2, R[src], w); outs.append((kap, d2))
        if pend: emitB(*pend)
        for kap, d2 in outs: emitA(kap, d2)
    stamp(a, "tables")
    a(f"""
    v_and_b32 v4, 31, v1
    v_mul_u32_u24 v4, {TROW}, v4
    v_lshrrev_b32 v5, 5, v1
    v_lshlrev_b32 v5, 4, v5
    v_add3_u32 v4, v4, v5, s4
    s_waitcnt lgkmcnt(0)
    """)
    D = 32; FA, FB = 64, 96
    for tt in range(8):
        a(f"ds_read_b128 v[{FA+4*tt}:{FA+4*tt+3}], v4 offset:{tt*32}")
        a(f"ds_read_b128 v[{FB+4*tt}:{FB+4*tt+3}], v4 offset:{TABB + tt*32}")
    for tt in range(8):
        a(f"s_waitcnt lgkmcnt({min(15, 2*(7-tt))})")
        c = "0" if tt == 0 else f"v[{D}:{D+15}]"
        a(f"v_mfma_f32_32x32x16_bf16 v[{D}:{D+15}], v[{FA+4*tt}:{FA+4*tt+3}], v[{FB+4*tt}:{FB+4*tt+3}], {c}")

def kgen_rest(a):
    D = 32
    a(f"""
    s_lshl_b32 s4, s{sCH}, 12
    s_add_u32 s4, s4, {XCH}
    v_lshlrev_b32 v3, 4, v1
    v_add_u32 v3, s4, v3
    s_cmp_eq_u32 s{sMH}, 0
    s_cbranch_scc1 L_kg_a
    """)
    for g in range(4):
        a(f"ds_write_b128 v3, v[{D+4*g}:{D+4*g+3}] offset:{g*1024}")
    a("s_waitcnt lgkmcnt(0)")
    a.label("L_kg_a")
    a("s_barrier")
    a(f"s_cmp_eq_u32 s{sMH}, 0")
    a("s_cbranch_scc0 L_kg_b")
    for g in range(4):
        a(f"ds_read_b128 v[{64+4*g}:{64+4*g+3}], v3 offset:{g*1024}")
    a("s_waitcnt lgkmcnt(0)")
    for i in range(0, 16, 2):
        a(f"v_pk_add_f32 v[{D+i}:{D+i+1}], v[{D+i}:{D+i+1}], v[{64+i}:{64+i+1}]")
    a(f"""
    s_mul_i32 s4, s{sCH}, {KCH}
    s_add_u32 s4, s4, {KC + 4112 - 512*7}
    v_and_b32 v4, 31, v1
    v_lshlrev_b32 v4, 4, v4
    v_sub_u32 v4, s4, v4
    v_and_b32 v5, 1, v1
    v_cmp_eq_u32 vcc, 1, v5
    """)
    def blk(b, vals, P):
        for k, (lo, hi) in enumerate(vals):
            a(f"v_cvt_pk_bf16_f32 v{P+k}, v{lo}, v{hi}")
        a(f"ds_write_b128 v4, v[{P}:{P+3}] offset:{512*(7-b)}")
    d = lambda i: D + i
    for bb in range(4):
        a(f"v_cndmask_b32 v{80+bb}, v{d(3+2*bb)}, v{d(4+2*bb)}, vcc")
    a("s_mov_b32 exec_lo, -1")
    a("s_mov_b32 exec_hi, 0")
    blk(0, [(d(7), d(6)), (d(5), d(4)), (d(3), d(2)), (d(1), d(0))], 64)
    blk(1, [(d(12), d(11)), (d(10), d(10)), (d(10), d(9)), (d(8), d(8))], 68)
    blk(2, [(d(15), d(15)), (d(14), d(14)), (d(14), d(13)), (d(13), d(13))], 72)
    a("s_mov_b32 exec_lo, 0")
    a("s_mov_b32 exec_hi, -1")
    blk(3, [(d(2), d(2)), (d(1), d(1)), (d(1), d(0)), (d(0), d(0))], 64 + 20)
    for bb in range(4):
        L, H = d(3 + 2 * bb), d(4 + 2 * bb)
        blk(4 + bb, [(H, H), (H, 80 + bb), (L, L), (L, L)], 88 + 4 * bb)
    a("s_mov_b64 exec, -1")
    a(f"""
    v_mov_b32 v64, 0
    v_mov_b32 v65, 0
    v_mov_b32 v66, 0
    v_mov_b32 v67, 0
    s_mul_i32 s4, s{sCH}, {KCH}
    s_add_u32 s4, s4, {KC}
    v_lshlrev_b32 v4, 4, v1
    v_add_u32 v5, 4096, v4
    v_cmp_gt_u32 vcc, 2, v1
    v_cndmask_b32 v4, v5, v4, vcc
    v_add_u32 v4, s4, v4
    s_mov_b64 exec, 0xfffff
    ds_write_b128 v4, v[64:67]
    s_mov_b64 exec, -1
    s_waitcnt lgkmcnt(0)
    """)
    a.label("L_kg_b")
    a("s_barrier")
    stamp(a, "copy0")
    a(f"""
    s_mul_i32 s4, s{sCH}, {KCH}
    s_lshl_b32 s5, s{sMH}, 10
    s_add_u32 s4, s4, s5
    s_add_u32 s4, s4, {KC}
    v_lshlrev_b32 v4, 4, v1
    v_add_u32 v4, s4, v4
    """)
    for ps in range(3):
        Wd = 64 + 24 * ps
        if ps == 2:
            a(f"s_cmp_eq_u32 s{sMH}, 0")
            a("s_cbranch_scc0 L_kg_c")
            a("s_mov_b64 exec, 0xfffff")
        a(f"ds_read_b128 v[{Wd}:{Wd+3}], v4 offset:{ps*2048}")
        a(f"ds_read_b128 v[{Wd+4}:{Wd+7}], v4 offset:{ps*2048+16}")
        a("s_waitcnt lgkmcnt(0)")
        for k in range(4):
            a(f"v_alignbit_b32 v{Wd+8+k}, v{Wd+k+1}, v{Wd+k}, 16")
            a(f"v_mov_b32 v{Wd+12+k}, v{Wd+k+1}")
            a(f"v_alignbit_b32 v{Wd+16+k}, v{Wd+k+2}, v{Wd+k+1}, 16")
        for c in range(3):
            a(f"ds_write_b128 v4, v[{Wd+8+4*c}:{Wd+8+4*c+3}] offset:{ps*2048 + (c+1)*KCS}")
        if ps == 2:
            a("s_mov_b64 exec, -1")
            a.label("L_kg_c")

def ssm_role(a, K):
    S_TAG = K.S_TAG
    a(f"""
    s_setprio {os.environ.get("PRIO_S", "3")}
    s_and_b32 s3, s{S_J}, 7
    s_lshr_b32 s4, s{S_J}, 3
    s_and_b32 s5, s3, 1
    s_lshl_b32 s5, s5, 7
    s_lshr_b32 s6, s3, 1
    s_lshl_b32 s6, s6, 5
    s_add_u32 s5, s5, s6
    s_add_u32 s{S_JL}, s5, s4
    s_lshl_b32 s3, s3, 5
    s_add_u32 s{S_J}, s3, s4
    """)
    a(f"""
    s_lshl_b32 s3, s{S_JL}, 13
    s_lshl_b32 s4, s{S_WAVE}, 11
    s_add_u32 s3, s3, s4              ; row0*1024
    v_lshlrev_b32 v3, 4, v1
    v_add_u32 v3, s3, v3
    s_lshr_b32 s{sCH}, s{S_WAVE}, 1
    s_and_b32 s{sMH}, s{S_WAVE}, 1
    s_lshl_b32 s4, s{S_J}, 1
    s_add_u32 s4, s4, s{sCH}
    s_lshl_b32 s4, s4, 8
    s_lshl_b32 s5, s{sMH}, 7
    s_add_u32 s4, s4, s5
    v_lshlrev_b32 v12, 1, v1
    v_add_u32 v12, s4, v12
    v_mov_b32 v13, 0
    s_lshl_b32 s3, s{S_J}, 2
    s_waitcnt lgkmcnt(0)
    global_load_dwordx4 v[4:7], v3, s[{S_X}:{S_X+1}]
    global_load_dwordx4 v[8:11], v3, s[{S_X}:{S_X+1}] offset:1024
    global_load_dword v{EPV}, v13, s[{S_WS}:{S_WS+1}] sc1
    global_load_ushort v{PRM}, v12, s[{S_LOGA}:{S_LOGA+1}]
    global_load_ushort v{PRM+1}, v12, s[{S_AIM}:{S_AIM+1}]
    global_load_ushort v{PRM+2}, v12, s[{S_CRE}:{S_CRE+1}]
    global_load_ushort v{PRM+3}, v12, s[{S_CIM}:{S_CIM+1}]
    s_load_dword s{sDT}, s[{S_LOGDT}:{S_LOGDT+1}], s3
    s_load_dword s{sD}, s[{S_DSK}:{S_DSK+1}], s3
    s_waitcnt vmcnt(5)
    """)
    stamp(a, "xload")
    ln_part(a, K)
    stamp(a, "ln")
    a("s_waitcnt vmcnt(3)")
    K.tag_compute(a, EPV)
    kgen_tables(a)
    stamp(a, "kmfma")
    a("s_waitcnt vmcnt(0)")
    a("s_barrier")
    a(f"s_lshl_b32 s7, s{S_JL}, 4")
    K.flag_store(a, 7, K.WS_FLN, "L_fln", 100)
    stamp(a, "fln")
    kgen_rest(a)
    stamp(a, "kgen_end")
    a(f"""
    v_lshrrev_b32 v8, 5, v1
    v_lshlrev_b32 v8, 7, v8
    v_and_b32 v9, 31, v1
    v_add_u32 v8, v8, v9
    s_lshl_b32 s4, s{S_WAVE}, 5
    v_add_u32 v8, s4, v8
    v_lshlrev_b32 v8, 4, v8
    v_add_u32 v208, {K.WS_FLN:#x}, v8
    global_load_dword v209, v208, s[{S_WS}:{S_WS+1}] sc1
    s_add_u32 s64, s{S_WS}, {WS_XNB:#x}
    s_addc_u32 s65, s{S_WS+1}, 0
    v_lshrrev_b32 v8, 1, v0
    v_lshlrev_b32 v8, 13, v8
    v_and_b32 v9, 1, v0
    v_lshlrev_b32 v10, 4, v9
    s_lshl_b32 s4, s{S_J}, 5
    v_add3_u32 v8, v8, v10, s4
    v_add_u32 v10, 0x100000, v8
    s_waitcnt vmcnt(0)
    """)
    K.spin_check(a, [208], [209], "L_cl")
    stamp(a, "flnok")
    a(f"""
    global_load_dwordx4 v[200:203], v8, s[64:65] sc1
    global_load_dwordx4 v[204:207], v10, s[64:65] sc1
    """)
    ssm.store_u(a)
    a("s_waitcnt lgkmcnt(0)")
    a("s_barrier")
    stamp(a, "u_done")
    ssm.conv(a)
    stamp(a, "conv_end")
    a("s_waitcnt vmcnt(0)")
    a("s_barrier")
    a(f"s_lshl_b32 s7, s{S_J}, 4")
    K.flag_store(a, 7, K.WS_FY, "L_fy", 100)
    stamp(a, "fy")
    a(f"""
    s_cmp_eq_u32 s{S_J}, 0
    s_cbranch_scc0 L_done
    v_lshlrev_b32 v208, 4, v0
    v_add_u32 v208, {K.WS_F1:#x}, v208
    global_load_dword v209, v208, s[{S_WS}:{S_WS+1}] sc1
    s_waitcnt vmcnt(0)
    """)
    K.spin_check(a, [208], [209], "L_ce")
    a(f"""
    s_barrier
    s_cmp_eq_u32 s{S_WAVE}, 0
    s_cbranch_scc0 L_done
    v_add_u32 v209, 1, v{EPV}
    v_mov_b32 v208, 0
    s_mov_b64 exec, 1
    global_store_dword v208, v209, s[{S_WS}:{S_WS+1}] sc1
    s_mov_b64 exec, -1
    """)
```

```python
import sys, os
sys.path.insert(0, os.path.dirname(__file__))
import gen
from gen import *
import ssm2

WS_F1, WS_FLN, WS_FY = 0x1000, 0x2000, 0x3000
WS_P = 0x300000
S_RB, S_CB, S_TAG, S_RT, S_CT = 47, 48, 49, 50, 51
SPIN = int(os.environ.get("SPIN", "20000"))
ENV = lambda k: os.environ.get(k)
SENT = -1

class VQ:
    def __init__(self): self.q = []
    def add(self, tag, counted=True): self.q.append((tag, counted))
    def after(self, tags):
        last = max(i for i, (t, c) in enumerate(self.q) if t in tags)
        return sum(1 for (t, c) in self.q[last+1:] if c)

def epoch_issue(a, vdst, vtmp):
    a(f"v_mov_b32 v{vtmp}, 0")
    a(f"global_load_dword v{vdst}, v{vtmp}, s[{S_WS}:{S_WS+1}] sc1")

def tag_compute(a, vsrc):
    a(f"v_readfirstlane_b32 s{S_TAG}, v{vsrc}")
    a(f"s_mul_i32 s{S_TAG}, s{S_TAG}, 0x9E3779B1")
    a(f"s_add_u32 s{S_TAG}, s{S_TAG}, 0x7F4A7C15")

def flag_store(a, off_sreg, base, lab, vt):
    a(f"s_cmp_eq_u32 s{S_WAVE}, 0")
    a(f"s_cbranch_scc0 {lab}")
    a(f"s_add_u32 s3, s{off_sreg}, {base:#x}")
    a(f"v_mov_b32 v{vt}, s3")
    a(f"v_mov_b32 v{vt+1}, s{S_TAG}")
    a("s_mov_b64 exec, 1")
    a(f"global_store_dword v{vt}, v{vt+1}, s[{S_WS}:{S_WS+1}] sc1")
    a("s_mov_b64 exec, -1")
    a.label(lab)

def spin_check(a, vaddrs, vvals, lab):
    def cmp():
        if len(vvals) == 1:
            a(f"v_cmp_ne_u32 vcc, s{S_TAG}, v{vvals[0]}")
        else:
            a(f"v_cmp_ne_u32 vcc, s{S_TAG}, v{vvals[0]}")
            for v in vvals[1:]:
                a(f"v_cmp_ne_u32 s[4:5], s{S_TAG}, v{v}")
                a(f"s_or_b64 vcc, vcc, s[4:5]")
    cmp()
    a(f"s_cbranch_vccz {lab}_ok")
    a(f"s_mov_b32 s6, 0")
    a.label(f"{lab}_spin")
    a("s_sleep 2")
    for va, vv in zip(vaddrs, vvals):
        a(f"global_load_dword v{vv}, v{va}, s[{S_WS}:{S_WS+1}] sc1")
    a(f"s_add_u32 s6, s6, 1")
    a("s_waitcnt vmcnt(0)")
    cmp()
    a(f"s_cmp_ge_u32 s6, {SPIN}")
    a(f"s_cbranch_scc1 {lab}_ok")
    a(f"s_cbranch_vccnz {lab}_spin")
    a.label(f"{lab}_ok")

XL = 49152
def g1(a, q):
    SRDX, SRDW = 52, 56
    sWM, sWN, sXoff, sWoff, sMX, sMW = 60, 61, 62, 63, 64, 65
    sST, sH = 66, 68
    sCS, sFT0, sPb = 10, 11, 12
    vAad = [4, 5, 6]; vBad = [7, 8, 9, 10]; vXo = [11, 12, 13, 14]; vWo = [15, 16, 17]
    vST = [18, 20]; vFl, vFv, vHa, vEp = 22, 23, 24, 25
    vT = 26
    AF = [32, 44]; BF = [56, 88]; SEL = 120; ONES = 124; CD = 128; PF = 128
    CSV = [56, 72, 140]
    ACC = 160
    def acc(j, jn): return ACC + (j * 2 + jn) * 16
    a(f"""
    s_and_b32 s3, s{S_J}, 7
    s_lshr_b32 s4, s{S_J}, 3
    s_and_b32 s5, s3, 1
    s_lshl_b32 s5, s5, 3
    s_and_b32 s6, s4, 7
    s_add_u32 s{S_RB}, s5, s6
    s_lshr_b32 s5, s3, 1
    s_lshl_b32 s5, s5, 2
    s_lshr_b32 s6, s4, 3
    s_add_u32 s{S_CB}, s5, s6
    s_lshl_b32 s3, s3, 2
    s_lshr_b32 s5, s4, 3
    s_add_u32 s{S_RT}, s3, s5
    s_and_b32 s{S_CT}, s4, 7
    s_and_b32 s{sWM}, s{S_WAVE}, 1
    s_lshr_b32 s{sWN}, s{S_WAVE}, 1
    s_setprio {os.environ.get("PRIO_G", "0")}
    """)
    a(f"""
    v_lshrrev_b32 v{vT}, 3, v1             ; r
    v_and_b32 v{vT+1}, 7, v1               ; p
    v_lshrrev_b32 v{vT+2}, 1, v{vT}        ; r>>1
    v_xor_b32 v{vT+3}, v{vT+1}, v{vT+2}    ; p ^ (r>>1)
    v_lshlrev_b32 v{vT+4}, 10, v{vT}       ; r*1024
    s_lshl_b32 s3, s{S_WAVE}, 15           ; w*4*8192
    v_add_u32 v{vT+4}, s3, v{vT+4}
    """)
    for ii in range(4):
        a(f"v_xor_b32 v{vT+5}, {4*(ii&1)}, v{vT+3}")
        a(f"v_lshl_add_u32 v{vXo[ii]}, v{vT+5}, 4, v{vT+4}")
        if ii > 0: a(f"v_add_u32 v{vXo[ii]}, {ii*8192}, v{vXo[ii]}")
    a(f"s_lshl_b32 s3, s{sWM}, 1")
    a(f"s_mul_i32 s4, s{sWN}, {16*2752}")
    for i in range(3):
        a(f"""
        v_add_u32 v{vT}, {64*i}, v1
        v_mul_u32_u24 v{vT+1}, 0x5556, v{vT}
        v_lshrrev_b32 v{vT+1}, 18, v{vT+1}      ; row = u/12
        v_mul_u32_u24 v{vT+2}, 12, v{vT+1}
        v_sub_u32 v{vT+2}, v{vT}, v{vT+2}       ; pos
        v_xor_b32 v{vT+2}, s3, v{vT+2}
        v_lshlrev_b32 v{vT+2}, 4, v{vT+2}
        v_mul_u32_u24 v{vT+1}, 2752, v{vT+1}
        v_add3_u32 v{vWo[i]}, v{vT+1}, v{vT+2}, s4
        """)
    a(f"""
    s_and_b32 s5, s{S_RB}, {ENV("ROTMASK") or 7}                    ; rot
    s_lshl_b32 s{sXoff}, s5, 7
    s_mul_i32 s{sWoff}, s5, {64*2752}
    s_lshl_b32 s{sMX}, s{S_WAVE}, 12
    s_add_u32 s{sMX}, s{sMX}, {XL}
    s_mul_i32 s{sMW}, s{sWN}, 6144
    s_mul_i32 s3, s{sWM}, 3072
    s_add_u32 s{sMW}, s{sMW}, s3
    s_waitcnt lgkmcnt(0)
    s_lshl_b32 s3, s{S_RB}, 17
    s_add_u32 s{SRDX}, s{S_X}, s3
    s_addc_u32 s{SRDX+1}, s{S_X+1}, 0
    s_and_b32 s{SRDX+1}, s{SRDX+1}, 0xffff
    s_mov_b32 s{SRDX+2}, 0x20000
    s_mov_b32 s{SRDX+3}, 0x20000
    s_cmp_eq_u32 s{sWM}, 0
    s_cselect_b32 s{SRDW}, s{S_WG}, s{S_WU}
    s_cselect_b32 s{SRDW+1}, s{S_WG+1}, s{S_WU+1}
    s_mul_i32 s3, s{S_CB}, 192
    s_add_u32 s{SRDW}, s{SRDW}, s3
    s_addc_u32 s{SRDW+1}, s{SRDW+1}, 0
    s_and_b32 s{SRDW+1}, s{SRDW+1}, 0xffff
    s_sub_u32 s{SRDW+2}, {512*2752}, s3
    s_mov_b32 s{SRDW+3}, 0x20000
    s_cmp_ge_u32 s{S_CB}, 15
    s_cbranch_scc1 L_idle
    """)
    def issue_list(stage):
        st = stage + 3; L = []
        if st < 16:
            for i in range(3):
                t = f"s_add_u32 m0, s{sMW}, {(st % 4) * 12288 + i * 1024}\nbuffer_load_dwordx4 v{vWo[i]}, s[{SRDW}:{SRDW+3}], s{sWoff} offen lds"
                if i == 2:
                    t += f"\ns_add_u32 s{sWoff}, s{sWoff}, {32*2752}\ns_cmp_ge_u32 s{sWoff}, {512*2752}\ns_cselect_b32 s3, {512*2752}, 0\ns_sub_u32 s{sWoff}, s{sWoff}, s3"
                L.append((t, ("W", st)))
        if stage % 2 != 0 and st // 2 < 8:
            c = st // 2
            for ii in range(4):
                t = f"s_add_u32 m0, s{sMX}, {(c % 2) * 16384 + ii * 1024}\nbuffer_load_dwordx4 v{vXo[ii]}, s[{SRDX}:{SRDX+3}], s{sXoff} offen lds"
                if ii == 3: t += f"\ns_add_u32 s{sXoff}, s{sXoff}, 128\ns_and_b32 s{sXoff}, s{sXoff}, 1023"
                L.append((t, ("X", c)))
        return L
    L3, L2, L1 = issue_list(-3), issue_list(-2), issue_list(-1)
    for t, tag in L3 + L2 + L1:
        a(t); q.add(tag)
    epoch_issue(a, vEp, vT); q.add("E")
    a(f"""
    s_and_b32 s3, s{S_CB}, 3
    s_lshl_b32 s3, s3, 15
    v_lshrrev_b32 v{vT}, 3, v0
    v_lshlrev_b32 v{vT}, 10, v{vT}
    v_and_b32 v{vT+1}, 7, v0
    v_lshl_add_u32 v{vT}, v{vT+1}, 7, v{vT}
    """)
    if not ENV("NOTOUCH"):
        a(f"buffer_load_dword v2, v{vT}, s[{SRDX}:{SRDX+3}], s3 offen")
        q.add("touch")
    a(f"""
    s_add_u32 s{sH}, s{S_WS}, {WS_H:#x}
    s_addc_u32 s{sH+1}, s{S_WS+1}, 0
    s_lshl_b32 s3, s{S_RB}, 2
    s_lshl_b32 s4, s{sWN}, 1
    s_add_u32 s3, s3, s4
    s_mul_i32 s3, s3, 86
    s_mul_i32 s4, s{S_CB}, 6
    s_mul_i32 s5, s{sWM}, 3
    s_add_u32 s{sFT0}, s4, s5          ; ft0
    s_add_u32 s3, s3, s{sFT0}
    s_lshl_b32 s3, s3, 10
    v_lshlrev_b32 v{vHa}, 4, v1
    v_add_u32 v{vHa}, s3, v{vHa}
    v_mov_b32 v{CD}, -1
    v_mov_b32 v{CD+1}, -1
    v_mov_b32 v{CD+2}, -1
    v_mov_b32 v{CD+3}, -1
    """)
    for j in range(3):
        a(f"s_add_u32 s5, s{sFT0}, {j}")
        a(f"s_cmp_ge_u32 s5, 86")
        a(f"s_cbranch_scc1 L_clr{j}")
        for jn in range(2):
            off = jn * 86 * 1024 + j * 1024
            a(f"v_add_u32 v{vT+(jn&1)}, {off}, v{vHa}")
            if not ENV("NOCLR"): a(f"global_store_dwordx4 v{vT+(jn&1)}, v[{CD}:{CD+3}], s[{sH}:{sH+1}] sc1")
        a.label(f"L_clr{j}")
    q.add("early", False)
    a(f"""
    v_bfe_u32 v{vT}, v1, 4, 1              ; mat
    v_lshrrev_b32 v{vT+1}, 5, v1           ; hh
    v_bfe_u32 v{vT+2}, v1, 2, 2            ; r
    v_lshl_add_u32 v{vT+2}, v{vT+1}, 3, v{vT+2}   ; 8hh + r
    v_mul_u32_u24 v{vT+2}, 192, v{vT+2}
    v_mul_u32_u24 v{vT+3}, 3072, v{vT}
    v_add_u32 v{vT+2}, v{vT+2}, v{vT+3}
    v_bfe_u32 v{vT+3}, v1, 1, 1            ; c>>1
    v_lshlrev_b32 v{vT+3}, 4, v{vT+3}
    v_and_b32 v{vT+4}, 1, v1
    v_lshlrev_b32 v{vT+4}, 3, v{vT+4}
    v_add3_u32 v{vT+2}, v{vT+2}, v{vT+3}, v{vT+4}
    s_mul_i32 s3, s{sWM}, 3
    """)
    for j in range(3):
        a(f"""
        s_add_u32 s4, s3, {j}
        v_xor_b32 v{vT+3}, s4, v{vT}
        v_lshl_add_u32 v{vAad[j]}, v{vT+3}, 5, v{vT+2}
        """)
    a(f"""
    v_and_b32 v{vT}, 31, v1
    v_bfe_u32 v{vT+2}, v{vT}, 1, 3
    s_lshl_b32 s3, s{sWN}, 13
    s_add_u32 s3, s3, {XL}
    v_lshlrev_b32 v{vT+3}, 7, v{vT}
    v_add_u32 v{vT+3}, s3, v{vT+3}
    """)
    for ks in range(4):
        a(f"""
        v_add_u32 v{vT+4}, {2*ks}, v{vT+1}
        v_xor_b32 v{vT+4}, v{vT+4}, v{vT+2}
        v_lshl_add_u32 v{vBad[ks]}, v{vT+4}, 4, v{vT+3}
        """)
    a(f"""
    v_lshrrev_b32 v{vT}, 4, v1
    v_xor_b32 v{vT}, v{vT}, v1
    v_and_b32 v{vT}, 1, v{vT}
    v_cmp_eq_u32 vcc, 0, v{vT}
    v_mov_b32 v{vT}, s{S_ONES}
    v_cndmask_b32 v{SEL}, 0, v{vT}, vcc
    v_mov_b32 v{SEL+1}, v{SEL}
    v_mov_b32 v{SEL+2}, v{SEL}
    v_mov_b32 v{SEL+3}, v{SEL}
    v_mov_b32 v{ONES}, s{S_ONES}
    v_mov_b32 v{ONES+1}, s{S_ONES}
    v_mov_b32 v{ONES+2}, s{S_ONES}
    v_mov_b32 v{ONES+3}, s{S_ONES}
    s_lshr_b32 s3, s{S_RB}, 3
    s_cmp_eq_u32 s{sWN}, 0
    s_cselect_b32 s{sCS}, s3, 2
    s_add_u32 s{sPb}, s{S_WS}, {WS_P:#x}
    s_addc_u32 s{sPb+1}, s{S_WS+1}, 0
    s_lshl_b32 s3, s{S_CB}, 4              ; cb*16
    s_add_u32 s3, s3, {WS_F1:#x}
    v_and_b32 v{vT}, 15, v1
    v_lshl_add_u32 v{vFl}, v{vT}, 8, s3    ; F1[(l&15)*16 + cb]
    s_lshl_b32 s3, s{S_RB}, 8
    s_add_u32 s3, s3, {WS_FLN:#x}
    v_lshl_add_u32 v{vT+1}, v{vT}, 4, s3
    s_lshr_b32 s3, s{S_RT}, 1
    s_lshl_b32 s3, s3, 8
    s_add_u32 s3, s3, {WS_F1:#x}
    v_lshl_add_u32 v{vT+2}, v{vT}, 4, s3   ; F1[rbG2*16 + i]
    v_lshrrev_b32 v{vT+3}, 4, v1
    v_cmp_eq_u32 vcc, 1, v{vT+3}
    v_cndmask_b32 v{vFl}, v{vFl}, v{vT+1}, vcc
    v_cmp_eq_u32 vcc, 2, v{vT+3}
    v_cndmask_b32 v{vFl}, v{vFl}, v{vT+2}, vcc
    """)
    def a_reads(t):
        st = t // 2; A = AF[t % 2]; base = (st % 4) * 12288 + (t % 2) * 6144; L = []
        for j in range(3):
            L.append(f"ds_read_b64_tr_b16 v[{A+4*j}:{A+4*j+1}], v{vAad[j]} offset:{base}")
            L.append(f"ds_read_b64_tr_b16 v[{A+4*j+2}:{A+4*j+3}], v{vAad[j]} offset:{base+768}")
        return L
    def b_reads(c, kss):
        Bb = BF[c % 2]; L = []
        for ks in kss:
            for jn in range(2):
                L.append(f"ds_read_b128 v[{Bb+8*ks+4*jn}:{Bb+8*ks+4*jn+3}], v{vBad[ks]} offset:{(c%2)*16384 + jn*4096}")
        return L
    def xbar(st):
        need = [("W", st)] + ([("X", st // 2)] if st % 2 == 0 else [])
        if st == FLAG_ST: need.append("early")
        a(f"s_waitcnt vmcnt({q.after(need)})")
        a("s_barrier")
    FLAG_ST = 4
    POLL_ST = 10
    CHK_ST = 12
    xbar(0)
    stamp(a, "x0")
    pend = []
    pend += issue_list(0)
    for r in b_reads(0, [0]) + a_reads(0): a(r)
    for t in range(32):
        fill = []
        if t + 1 < 32:
            rd = a_reads(t + 1)
            if (t + 1) % 4 == 0: rd = rd + b_reads((t + 1) // 4, [0])
            if t % 4 == 0: rd = rd + b_reads(t // 4, [1, 2, 3])
            if t % 4 == 0: rd = b_reads(t // 4, [1]) + a_reads(t + 1) + b_reads(t // 4, [2, 3])
            fill += [(r, None) for r in rd]
        a("s_waitcnt lgkmcnt(0)")
        A = AF[t % 2]; B = BF[(t // 4) % 2] + (t % 4) * 8
        k = 0
        for j in range(3):
            for jn in range(2):
                d = acc(j, jn)
                c = "0" if t == 0 else f"v[{d}:{d+15}]"
                a(f"v_mfma_f32_32x32x16_bf16 v[{d}:{d+15}], v[{A+4*j}:{A+4*j+3}], v[{B+4*jn}:{B+4*jn+3}], {c}")
                if k == 0 and t % 2 == 1:
                    st = (t + 1) // 2
                    if st < 16:
                        xbar(st)
                        if st in (8, 12): stamp(a, f"x{st}")
                        pend += issue_list(st)
                        if st == FLAG_ST:
                            tag_compute(a, vEp)
                            a(f"s_lshl_b32 s7, s{S_RB}, 4")
                            a(f"s_add_u32 s7, s7, s{S_CB}")
                            a(f"s_lshl_b32 s7, s7, 4")
                            flag_store(a, 7, WS_F1, "L_f1", vT)
                        if st == POLL_ST:
                            pend.insert(0, (f"global_load_dword v{vFv}, v{vFl}, s[{S_WS}:{S_WS+1}] sc1", "poll"))
                        if st == CHK_ST:
                            a(f"s_waitcnt vmcnt({q.after(['poll'])})")
                            spin_check(a, [vFl], [vFv], "L_c1")
                            s = f"""s_add_u32 s{sST}, s{S_WS}, {WS_STATS:#x}
                            s_addc_u32 s{sST+1}, s{S_WS+1}, 0
                            s_lshl_b32 s3, s{S_RB}, 7
                            s_lshl_b32 s4, s{sWN}, 6
                            s_add_u32 s3, s3, s4
                            v_and_b32 v{vT}, 31, v1
                            v_add_u32 v{vT+4}, s3, v{vT}
                            v_lshlrev_b32 v{vT+4}, 3, v{vT+4}
                            global_load_dwordx2 v[{vST[0]}:{vST[0]+1}], v{vT+4}, s[{sST}:{sST+1}] sc1"""
                            pend.insert(0, (s, "stats"))
                            pend.insert(1, (f"global_load_dwordx2 v[{vST[1]}:{vST[1]+1}], v{vT+4}, s[{sST}:{sST+1}] offset:256 sc1", "stats"))
                            s = f"""s_lshl_b32 s3, s{sFT0}, 10
                            v_lshlrev_b32 v{vT+5}, 5, v{vT}
                            v_lshrrev_b32 v{vT+3}, 5, v1
                            v_lshl_add_u32 v{vT+5}, v{vT+3}, 4, v{vT+5}
                            v_add_u32 v{vT+5}, s3, v{vT+5}
                            global_load_dwordx4 v[{PF}:{PF+3}], v{vT+5}, s[{sPb}:{sPb+1}] sc1"""
                            pend.insert(2, (s, "pf"))
                            pend.insert(3, (f"global_load_dwordx4 v[{PF+4}:{PF+7}], v{vT+5}, s[{sPb}:{sPb+1}] offset:1024 sc1", "pf"))
                            pend.insert(4, (f"global_load_dwordx4 v[{PF+8}:{PF+11}], v{vT+5}, s[{sPb}:{sPb+1}] offset:2048 sc1", "pf"))
                    else:
                        a("s_barrier")
                nf = 2
                for _ in range(nf):
                    if fill: a(fill.pop(0)[0])
                    elif pend and (k >= 2 or t % 2 == 0):
                        tx, tg = pend.pop(0); a(tx); q.add(tg); break
                k += 1
        while fill: a(fill.pop(0)[0])
        if t % 2 == 0 and pend and len(pend) > 3:
            pass
        if t % 2 == 0:
            while pend:
                tx, tg = pend.pop(0); a(tx); q.add(tg)
        if t < 4:
            s_ = t // 2
            a(f"s_cmp_eq_u32 s{sCS}, {s_}")
            a(f"s_cbranch_scc0 L_cs{t}")
            for j in range(3):
                c = "0" if t % 2 == 0 else f"v[{CD+4*j}:{CD+4*j+3}]"
                a(f"v_mfma_f32_16x16x32_bf16 v[{CD+4*j}:{CD+4*j+3}], v[{SEL}:{SEL+3}], v[{A+4*j}:{A+4*j+3}], {c}")
            a.label(f"L_cs{t}")
        if t == 4:
            a(f"s_cmp_ge_u32 s{sCS}, 2")
            a(f"s_cbranch_scc1 L_cs4")
            a(f"""
            s_mov_b64 vcc, 0xffff
            s_lshl_b32 s3, s{sFT0}, 10
            s_lshl_b32 s4, s{S_RB}, 1
            s_add_u32 s3, s3, s4
            v_and_b32 v{vT}, 31, v1
            v_lshl_add_u32 v{vT}, v{vT}, 5, s3
            """)
            for j in range(3):
                a(f"v_cndmask_b32 v{vT+1+j}, v{CD+4*j+1}, v{CD+4*j}, vcc")
            for j in range(3):
                a(f"v_cvt_pk_bf16_f32 v{vT+1+j}, v{vT+1+j}, v{vT+1+j}")
            a("s_mov_b64 exec, 0xffffffff")
            for j in range(3):
                a(f"global_store_short v{vT}, v{vT+1+j}, s[{sPb}:{sPb+1}] offset:{j*1024} sc1")
            a("s_mov_b64 exec, -1")
            a.label("L_cs4")
            q.add("early", False)
    stamp(a, "g1loop")
    a(f"s_waitcnt vmcnt({q.after(['pf', 'stats'])})")
    for j in range(3):
        a(f"v_mfma_f32_32x32x16_bf16 v[{CSV[j]}:{CSV[j]+15}], v[{PF+4*j}:{PF+4*j+3}], v[{ONES}:{ONES+3}], 0")
    for jn in range(2):
        a(f"v_mul_f32 v{vT+2+2*jn}, v{vST[jn]+1}, v{vST[jn]+1}")
    for j in range(3):
        a(f"s_add_u32 s5, s{sFT0}, {j}")
        a(f"s_cmp_ge_u32 s5, 86")
        a(f"s_cbranch_scc1 L_g1_skip{j}")
        for jn in range(2):
            d = acc(j, jn); cs = CSV[j]; st = vST[jn]
            for i in range(0, 16, 2):
                a(f"v_pk_fma_f32 v[{d+i}:{d+i+1}], v[{cs+i}:{cs+i+1}], v[{st}:{st+1}], v[{d+i}:{d+i+1}] op_sel_hi:[1,0,1] neg_lo:[0,1,0] neg_hi:[0,1,0]")
            for i in range(0, 8, 2):
                a(f"v_pk_mul_f32 v[{d+i}:{d+i+1}], v[{d+i}:{d+i+1}], v[{d+i+8}:{d+i+9}]")
            r2 = vT + 2 + 2 * jn
            for i in range(0, 8, 2):
                a(f"v_pk_mul_f32 v[{d+i}:{d+i+1}], v[{d+i}:{d+i+1}], v[{r2}:{r2+1}] op_sel_hi:[1,0]")
            for i in range(4):
                a(f"v_cvt_pk_bf16_f32 v{d+8+i}, v{d+2*i}, v{d+2*i+1}")
            off = jn * 86 * 1024 + j * 1024
            a(f"v_add_u32 v{vT+jn}, {off}, v{vHa}")
            a(f"global_store_dwordx4 v{vT+jn}, v[{d+8}:{d+11}], s[{sH}:{sH+1}] sc1")
        a.label(f"L_g1_skip{j}")
    q.add("hst", False)
    stamp(a, "g1end")

def idle_path(a):
    a.label("L_idle")
    epoch_issue(a, 25, 26)
    a("s_waitcnt vmcnt(0)")
    a("s_barrier")
    tag_compute(a, 25)
    a(f"s_lshl_b32 s7, s{S_RB}, 4")
    a(f"s_add_u32 s7, s7, s{S_CB}")
    a(f"s_lshl_b32 s7, s7, 4")
    flag_store(a, 7, WS_F1, "L_f1i", 26)
    a(f"""
    s_lshr_b32 s3, s{S_RT}, 1
    s_lshl_b32 s3, s3, 8
    s_add_u32 s3, s3, {WS_F1:#x}
    v_and_b32 v26, 15, v1
    v_lshl_add_u32 v22, v26, 4, s3
    global_load_dword v23, v22, s[{S_WS}:{S_WS+1}] sc1
    s_waitcnt vmcnt(0)
    """)
    spin_check(a, [22], [23], "L_ci")

NS = 22; NSL = 10; NWR = 12; HD = 9; WREG = 20480
def g2(a, q):
    SRDW, SRDH = 52, 56
    sWoff, sH0, sLB, sAO, sHoff = 60, 61, 62, 64, 63
    vWo = [4, 5]; vHo = [6, 7]; vA = [8, 9]; vXo = 10; vTw = 11; vT = 12
    vFy, vFyv = 18, 19
    HR = 24; WR = 96; ACC = 192
    XD = WR + 16; AOD = WR + 24
    H_AT = int(os.environ.get("H_AT", "11"))
    a(f"""
    s_lshl_b32 s3, s{S_CT}, 7
    s_add_u32 s{SRDW}, s{S_WD}, s3
    s_addc_u32 s{SRDW+1}, s{S_WD+1}, 0
    s_and_b32 s{SRDW+1}, s{SRDW+1}, 0xffff
    s_sub_u32 s{SRDW+2}, {1376*1024}, s3
    s_mov_b32 s{SRDW+3}, 0x20000
    s_mul_i32 s3, s{S_RT}, {2*86*1024}
    s_add_u32 s3, s3, {WS_H:#x}
    s_add_u32 s{SRDH}, s{S_WS}, s3
    s_addc_u32 s{SRDH+1}, s{S_WS+1}, 0
    s_and_b32 s{SRDH+1}, s{SRDH+1}, 0xffff
    s_mov_b32 s{SRDH+2}, {2*86*1024}
    s_mov_b32 s{SRDH+3}, 0x20000
    s_mul_i32 s3, s{S_WAVE}, 22
    s_cmp_ge_u32 s{S_WAVE}, 2
    s_subb_u32 s3, s3, 0
    s_cmp_ge_u32 s{S_WAVE}, 3
    s_subb_u32 s3, s3, 0
    s_lshl_b32 s{sWoff}, s3, 14
    s_lshl_b32 s{sH0}, s3, 10
    s_mul_i32 s{sLB}, s{S_WAVE}, {WREG}
    v_lshrrev_b32 v{vT}, 3, v1
    v_and_b32 v{vT+1}, 7, v1
    v_bfe_u32 v{vT+2}, v1, 4, 1
    v_lshlrev_b32 v{vT+2}, 2, v{vT+2}
    v_xor_b32 v{vT+1}, v{vT+1}, v{vT+2}
    v_lshlrev_b32 v{vT+1}, 4, v{vT+1}
    v_lshl_add_u32 v{vWo[0]}, v{vT}, 10, v{vT+1}
    v_add_u32 v{vWo[1]}, 8192, v{vWo[0]}
    """)
    def wdma(st):
        for ii in range(2):
            a(f"s_add_u32 m0, s{sLB}, {(st % NSL) * 2048 + ii * 1024}")
            a(f"buffer_load_dwordx4 v{vWo[ii]}, s[{SRDW}:{SRDW+3}], s{sWoff} offen lds")
            q.add(("W2", st))
        a(f"s_add_u32 s{sWoff}, s{sWoff}, 16384")
    for st in range(NSL): wdma(st)
    stamp(a, "w2iss")
    a(f"""
    v_lshlrev_b32 v{vHo[0]}, 4, v1
    v_add_u32 v{vHo[1]}, {86*1024}, v{vHo[0]}
    v_bfe_u32 v{vT}, v1, 2, 2              ; r
    v_lshrrev_b32 v{vT+1}, 5, v1           ; hh
    v_lshl_add_u32 v{vT+1}, v{vT+1}, 2, v{vT}
    v_lshlrev_b32 v{vT+1}, 7, v{vT+1}
    v_bfe_u32 v{vT+2}, v1, 4, 1            ; mhalf
    v_lshlrev_b32 v{vT+2}, 5, v{vT+2}
    v_and_b32 v{vT+3}, 3, v1
    v_lshlrev_b32 v{vT+3}, 3, v{vT+3}
    v_add3_u32 v{vT+1}, v{vT+1}, v{vT+2}, v{vT+3}
    v_add_u32 v{vT+1}, s{sLB}, v{vT+1}
    v_bfe_u32 v{vT+2}, v1, 3, 1
    v_lshlrev_b32 v{vT+2}, 6, v{vT+2}
    v_add_u32 v{vA[0]}, v{vT+1}, v{vT+2}
    v_xor_b32 v{vT+2}, 64, v{vT+2}
    v_add_u32 v{vA[1]}, v{vT+1}, v{vT+2}
    s_lshl_b32 s3, s{S_CT}, 9
    s_add_u32 s3, s3, {WS_FY:#x}
    v_and_b32 v{vT}, 31, v1
    v_lshl_add_u32 v{vFy}, v{vT}, 4, s3
    v_and_b32 v{vT}, 15, v1
    v_lshrrev_b32 v{vT+1}, 4, v1
    s_lshl_b32 s3, s{S_RT}, 6
    s_lshl_b32 s4, s{S_WAVE}, 4
    s_add_u32 s3, s3, s4
    s_lshl_b32 s3, s3, 10
    s_lshl_b32 s4, s{S_CT}, 7
    s_add_u32 s3, s3, s4
    v_lshlrev_b32 v{vXo}, 10, v{vT}
    v_lshl_add_u32 v{vXo}, v{vT+1}, 4, v{vXo}
    v_add_u32 v{vXo}, s3, v{vXo}
    """)
    for i in range(64):
        a(f"v_mov_b32 v{ACC+i}, 0")
    def areg(st):
        return WR + st * 8 if st < NWR else WR + (st % 2) * 8
    def wreads(st):
        A = areg(st); L = []
        for mt in range(2):
            L.append(f"ds_read_b64_tr_b16 v[{A+4*mt}:{A+4*mt+1}], v{vA[mt]} offset:{(st % NSL) * 2048}")
            L.append(f"ds_read_b64_tr_b16 v[{A+4*mt+2}:{A+4*mt+3}], v{vA[mt]} offset:{(st % NSL) * 2048 + 1024}")
        return L
    def hload(st, soff=None, track=True):
        for nt in range(2):
            r = HR + (st % HD) * 8 + nt * 4
            a(f"buffer_load_dwordx4 v[{r}:{r+3}], v{vHo[nt]}, s[{SRDH}:{SRDH+3}], s{soff if soff is not None else sHoff} offen sc1")
            if track: q.add(("H", st))
    def h_first():
        a(f"s_mov_b32 s{sHoff}, s{sH0}")
        for st in range(HD):
            hload(st); a(f"s_add_u32 s{sHoff}, s{sHoff}, 1024")
    for i in range(NWR):
        a(f"s_waitcnt vmcnt({q.after([('W2', i)])})")
        for r in wreads(i): a(r)
        a("s_waitcnt lgkmcnt(0)")
        if NSL + i < NS: wdma(NSL + i)
        if i == H_AT: h_first()
    stamp(a, "w2done")
    slow = []
    for t in range(NS):
        need = [("H", t)] + ([("W2", t + 1)] if NWR <= t + 1 < NS else [])
        a(f"s_waitcnt vmcnt({q.after(need)})")
        if t in (0, 14): stamp(a, f"h{t}")
        H = HR + (t % HD) * 8
        a.label(f"L_hchk{t}")
        a(f"v_max3_u32 v{vT}, v{H}, v{H+1}, v{H+2}")
        a(f"v_max3_u32 v{vT+1}, v{H+3}, v{H+4}, v{H+5}")
        a(f"v_max3_u32 v{vT}, v{vT}, v{H+6}, v{H+7}")
        a(f"v_max_u32 v{vT}, v{vT}, v{vT+1}")
        a(f"v_cmp_eq_u32 vcc, -1, v{vT}")
        a(f"s_cbranch_vccnz L_hslow{t}")
        a.label(f"L_hok{t}")
        slow.append(t)
        if t >= NWR: a("s_waitcnt lgkmcnt(0)")
        rd = wreads(t + 1) if NWR <= t + 1 < NS else []
        A = areg(t)
        if t == 0:
            a(f"s_cmp_ge_u32 s{S_WAVE}, 2")
            a("s_cbranch_scc1 L_g2_sk0")
        for mt in range(2):
            for nt in range(2):
                d = ACC + (mt * 2 + nt) * 16
                a(f"v_mfma_f32_32x32x16_bf16 v[{d}:{d+15}], v[{A+4*mt}:{A+4*mt+3}], v[{H+4*nt}:{H+4*nt+3}], v[{d}:{d+15}]")
                if rd: a(rd.pop(0))
        if t == 0: a.label("L_g2_sk0")
        if t + HD < NS:
            hload(t + HD); a(f"s_add_u32 s{sHoff}, s{sHoff}, 1024")
        if t == 4:
            a(f"global_load_dwordx4 v[{XD}:{XD+3}], v{vXo}, s[{S_X}:{S_X+1}]")
            a(f"global_load_dwordx4 v[{XD+4}:{XD+7}], v{vXo}, s[{S_X}:{S_X+1}] offset:64")
            q.add("x"); q.add("x")
        if t == 10:
            a(f"global_load_dword v{vFyv}, v{vFy}, s[{S_WS}:{S_WS+1}] sc1"); q.add("pfy")
        if t == 14:
            a(f"s_waitcnt vmcnt({q.after(['pfy'])})")
            spin_check(a, [vFy], [vFyv], "L_cy")
            a(f"""
            s_add_u32 s{sAO}, s{S_WS}, {WS_AO:#x}
            s_addc_u32 s{sAO+1}, s{S_WS+1}, 0
            v_lshrrev_b32 v{vT}, 3, v0
            v_and_b32 v{vT+1}, 7, v0
            s_lshl_b32 s3, s{S_CT}, 18
            s_lshl_b32 s4, s{S_RT}, 7
            s_add_u32 s3, s3, s4
            v_lshlrev_b32 v{vTw}, 12, v{vT}
            v_lshl_add_u32 v{vTw}, v{vT+1}, 4, v{vTw}
            v_add_u32 v{vTw}, s3, v{vTw}
            global_load_dwordx4 v[{AOD}:{AOD+3}], v{vTw}, s[{sAO}:{sAO+1}] sc1
            v_add_u32 v{vTw}, {32*4096}, v{vTw}
            global_load_dwordx4 v[{AOD+4}:{AOD+7}], v{vTw}, s[{sAO}:{sAO+1}] sc1
            ; T row for thread: d = t/8 (+32p) -> region (t/8 /8 = wave), idx = 8p + d%8
            v_and_b32 v{vT}, 7, v{vT}
            v_mul_u32_u24 v{vTw}, 144, v{vT}
            v_lshl_add_u32 v{vTw}, v{vT+1}, 4, v{vTw}
            s_add_u32 s3, s{sLB}, 16384
            v_add_u32 v{vTw}, s3, v{vTw}
            """)
            q.add("ao"); q.add("ao")
    stamp(a, "g2loop")
    a(f"""
    v_and_b32 v{vT}, 31, v1
    v_lshrrev_b32 v{vT+1}, 5, v1
    v_and_b32 v{vT+2}, 15, v1
    v_xor_b32 v{vT+2}, v{vT+2}, v{vT+1}
    v_lshlrev_b32 v{vT+2}, 4, v{vT+2}
    v_lshl_add_u32 v{vT+2}, v{vT}, 8, v{vT+2}
    v_add_u32 v{vT+2}, s{sLB}, v{vT+2}
    s_waitcnt vmcnt(0)
    ds_write_b128 v{vTw}, v[{AOD}:{AOD+3}]
    ds_write_b128 v{vTw}, v[{AOD+4}:{AOD+7}] offset:{8*144}
    """)
    for mt in range(2):
        for g in range(4):
            t = vT + 3 if (g & 1) else vT
            a(f"v_xor_b32 v{t}, {(8*mt + 2*g) << 4}, v{vT+2}")
            for nt in range(2):
                d = ACC + (mt * 2 + nt) * 16 + 4 * g
                a(f"ds_write_b128 v{t}, v[{d}:{d+3}] offset:{nt*8192}")
    a("s_waitcnt lgkmcnt(0)")
    a("s_barrier")
    stamp(a, "g2bar")
    P = 24; AOT = 88; E = 128
    a(f"""
    v_and_b32 v{vT}, 15, v1               ; i
    v_lshrrev_b32 v{vT+1}, 4, v1          ; g4
    s_lshl_b32 s3, s{S_WAVE}, 4
    v_add_u32 v{vT+2}, s3, v{vT}          ; l
    v_lshlrev_b32 v{vT+2}, 8, v{vT+2}
    v_lshlrev_b32 v{vT+3}, 1, v{vT+1}
    v_xor_b32 v{vT+3}, v{vT+3}, v{vT}
    v_lshl_add_u32 v{vT+2}, v{vT+3}, 4, v{vT+2}
    v_bfe_u32 v{vT+3}, v1, 2, 2           ; r
    v_mul_u32_u24 v{vT+3}, 144, v{vT+3}
    v_mul_u32_u24 v{vT+1}, {WREG}, v{vT+1}
    v_and_b32 v{vT}, 3, v1
    v_lshlrev_b32 v{vT}, 3, v{vT}
    s_lshl_b32 s3, s{S_WAVE}, 5
    s_add_u32 s3, s3, 16384
    v_add3_u32 v{vT+3}, v{vT+3}, v{vT}, s3
    v_add_u32 v{vT+3}, v{vT+3}, v{vT+1}
    """)
    for p in range(2):
        for qq in range(2):
            a(f"ds_read_b64_tr_b16 v[{AOT+(2*p+qq)*2}:{AOT+(2*p+qq)*2+1}], v{vT+3} offset:{(8*p + 4*qq)*144}")
    for p in range(2):
        for qq in range(2):
            t = vT if (qq & 1) else vT + 1
            a(f"v_xor_b32 v{t}, {(8*p + qq) << 4}, v{vT+2}")
            for w in range(4):
                r = P + (2*p+qq)*16 + w*4
                a(f"ds_read_b128 v[{r}:{r+3}], v{t} offset:{w*WREG}")
    for p in range(2):
        for qq in range(2):
            k = 2*p + qq
            a(f"s_waitcnt lgkmcnt({min(15, 4*(3-k))})")
            r = P + k*16
            for h2 in range(2):
                a(f"v_pk_add_f32 v[{r+2*h2}:{r+2*h2+1}], v[{r+2*h2}:{r+2*h2+1}], v[{r+4+2*h2}:{r+4+2*h2+1}]")
                a(f"v_pk_add_f32 v[{r+8+2*h2}:{r+8+2*h2+1}], v[{r+8+2*h2}:{r+8+2*h2+1}], v[{r+12+2*h2}:{r+12+2*h2+1}]")
            for h2 in range(2):
                a(f"v_pk_add_f32 v[{r+2*h2}:{r+2*h2+1}], v[{r+2*h2}:{r+2*h2+1}], v[{r+8+2*h2}:{r+8+2*h2+1}]")
            e = E + k * 20
            for h2 in range(2):
                xr = XD + 4*p + 2*qq + h2; ar = AOT + 2*k + h2; e2 = e + 10*h2
                a(f"v_lshlrev_b32 v{e2+0}, 16, v{xr}")
                a(f"v_and_b32 v{e2+1}, 0xffff0000, v{xr}")
                a(f"v_lshlrev_b32 v{e2+2}, 16, v{ar}")
                a(f"v_and_b32 v{e2+3}, 0xffff0000, v{ar}")
                a(f"v_pk_add_f32 v[{e2}:{e2+1}], v[{e2}:{e2+1}], v[{e2+2}:{e2+3}]")
                a(f"v_cvt_pk_bf16_f32 v{e2+4}, v{e2}, v{e2+1}")
                a(f"v_cvt_pk_bf16_f32 v{e2+5}, v{r+2*h2}, v{r+2*h2+1}")
                a(f"v_lshlrev_b32 v{e2+6}, 16, v{e2+4}")
                a(f"v_and_b32 v{e2+7}, 0xffff0000, v{e2+4}")
                a(f"v_lshlrev_b32 v{e2+8}, 16, v{e2+5}")
                a(f"v_and_b32 v{e2+9}, 0xffff0000, v{e2+5}")
                a(f"v_pk_add_f32 v[{e2+6}:{e2+7}], v[{e2+6}:{e2+7}], v[{e2+8}:{e2+9}]")
                a(f"v_cvt_pk_bf16_f32 v{xr}, v{e2+6}, v{e2+7}")
        a(f"global_store_dwordx4 v{vXo}, v[{XD+4*p}:{XD+4*p+3}], s[{S_OUT}:{S_OUT+1}] offset:{64*p}")
    stamp(a, "g2end")
    a("s_branch L_done")
    for t in slow:
        a.label(f"L_hslow{t}")
        a("s_mov_b32 s6, 0")
        a.label(f"L_hspin{t}")
        a("s_sleep 4")
        for st in range(t, min(t + HD, NS)):
            a(f"s_add_u32 s7, s{sH0}, {st*1024}")
            hload(st, soff=7, track=False)
        a("s_add_u32 s6, s6, 1")
        a("s_waitcnt vmcnt(0)")
        H = HR + (t % HD) * 8
        a(f"v_max3_u32 v{vT}, v{H}, v{H+1}, v{H+2}")
        a(f"v_max3_u32 v{vT+1}, v{H+3}, v{H+4}, v{H+5}")
        a(f"v_max3_u32 v{vT}, v{vT}, v{H+6}, v{H+7}")
        a(f"v_max_u32 v{vT}, v{vT}, v{vT+1}")
        a(f"v_cmp_eq_u32 vcc, -1, v{vT}")
        a(f"s_cmp_ge_u32 s6, {SPIN}")
        a(f"s_cbranch_scc1 L_hok{t}")
        a(f"s_cbranch_vccnz L_hspin{t}")
        a(f"s_branch L_hok{t}")

def gemm_role(a):
    q = VQ()
    g1(a, q)
    a.label("L_g2")
    g2(a, VQ())
    idle_path(a)
    a("s_branch L_g2")

def build():
    a = Asm()
    lab = NAME + "_kernel"
    head = "; @launch grid=(512,1,1) block=(256,1,1) lds=81920\n"
    a.raw('.amdgcn_target "amdgcn-amd-amdhsa--gfx950"')
    a.raw(".text")
    kernel_header(a, lab)
    exit_if_ge(a, 512, "L_exit")
    stamp(a, "RTstart"); stamp(a, "start")
    prologue(a)
    a("s_cmp_ge_u32 s2, 256")
    a("s_cbranch_scc1 L_ssm")
    a(f"s_mov_b32 s{S_J}, s2")
    gemm_role(a)
    namesG = list(gen.ST.names); nG = gen.ST.n
    a.label("L_ssm")
    gen.ST.n = 2; gen.ST.names = gen.ST.names[:2]
    a(f"s_sub_u32 s{S_J}, s2, 256")
    if ENV("NOSSM"): a("s_branch L_done")
    ssm2.ssm_role(a, sys.modules[__name__])
    namesS = list(gen.ST.names); nS = gen.ST.n
    a.label("L_done")
    if gen.STAMPS:
        a("s_memrealtime s[100:101]")
        gen.ST.n = 16
        dump_stamps(a, 0)
        print("GEMM stamps", namesG); print("SSM stamps", namesS)
    a.label("L_exit")
    a("s_endpgm")
    return head + a.render() + '.section .rodata,"a"\n' + kernel_desc(lab)

if __name__ == "__main__":
    if os.environ.get("STAMPS"): gen.STAMPS = True
    src = build()
    out = sys.argv[1] if len(sys.argv) > 1 else f"cdna_kernels/{NAME}.s"
    open(out, "w").write(src)
    print("wrote", out, len(src), "bytes")
```

```python
import re

def v(n, c=1):
    return f"v{n}" if c == 1 else f"v[{n}:{n+c-1}]"
def s(n, c=1):
    return f"s{n}" if c == 1 else f"s[{n}:{n+c-1}]"

_REG = re.compile(r"\b([vsa])(\d+)\b|\b([vsa])\[(\d+):(\d+)\]|\b(vcc_lo|vcc_hi|vcc|exec_lo|exec_hi|exec|m0|scc)\b")

def regs_of(tok):
    out = set()
    for m in _REG.finditer(tok):
        if m.group(1):
            out.add((m.group(1), int(m.group(2))))
        elif m.group(3):
            for i in range(int(m.group(4)), int(m.group(5)) + 1):
                out.add((m.group(3), i))
        else:
            n = m.group(6)
            if n.startswith("vcc"): out.add(("vcc", 0))
            elif n.startswith("exec"): out.add(("exec", 0))
            else: out.add((n, 0))
    return out

TRANS = ("v_exp_f32", "v_log_f32", "v_rcp_f32", "v_rsq_f32", "v_sqrt_f32", "v_sin_f32", "v_cos_f32", "v_rcp_iflag_f32")

class Ins:
    __slots__ = ("text", "op", "kind", "wr", "rd", "passes", "srcc", "dpp", "sdwa", "states", "storedata", "lds_dma")
    def __init__(self, text):
        self.text = text
        t = text.split(";")[0].strip()
        parts = t.split(None, 1)
        self.op = op = parts[0]
        rest = parts[1] if len(parts) > 1 else ""
        ops = [o.strip() for o in re.split(r",(?![^\[]*\])", rest)]
        self.wr = set(); self.rd = set(); self.passes = 0; self.srcc = set(); self.storedata = set()
        self.dpp = ("dpp" in op) or bool(re.search(r"\b(row_shr|row_shl|row_ror|quad_perm|row_mirror|row_half_mirror|row_bcast|wave_shr|wave_shl|row_newbcast)", rest))
        self.sdwa = "sdwa" in op
        self.lds_dma = False
        self.states = 1
        base = re.sub(r"_(e32|e64|dpp|sdwa)$", "", op)
        if op == "s_nop":
            self.kind = "nop"; self.states = int(rest, 0) + 1; return
        if op.startswith("v_mfma"):
            self.kind = "mfma"
            self.passes = 8 if "32x32x16" in op else 4 if "16x16x32" in op else 16
            self.wr = regs_of(ops[0]); self.rd = regs_of(ops[1]) | regs_of(ops[2]) | regs_of(ops[3])
            self.srcc = regs_of(ops[3]); return
        if op.startswith(("buffer_", "global_", "flat_")):
            self.kind = "vmem"
            lds = bool(re.search(r"\blds\b", rest)) or "load_lds" in op
            self.lds_dma = lds
            if "load" in op and not lds:
                self.wr = regs_of(ops[0]); self.rd = set().union(*[regs_of(o) for o in ops[1:]])
            elif "atomic" in op:
                self.rd = set().union(*[regs_of(o) for o in ops])
                if re.search(r"\bsc0\b", rest): self.wr = regs_of(ops[0])
            else:
                self.rd = set().union(*[regs_of(o) for o in ops])
                if "store" in op and ("x3" in op or "x4" in op):
                    self.storedata = regs_of(ops[1] if op.startswith("global_") else ops[0])
                    self.storedata = {r for r in self.storedata if r[0] == "v"}
            if lds: self.rd.add(("m0", 0))
            return
        if op.startswith("ds_"):
            self.kind = "ds"
            if "read" in op or "bpermute" in op or "permute" in op or "swizzle" in op:
                self.wr = regs_of(ops[0]); self.rd = set().union(*[regs_of(o) for o in ops[1:]])
            else:
                self.rd = set().union(*[regs_of(o) for o in ops])
            return
        if op.startswith("s_"):
            self.kind = "salu"
            if op.startswith(("s_waitcnt", "s_barrier", "s_branch", "s_cbranch", "s_endpgm", "s_setprio", "s_sleep")):
                return
            if op.startswith("s_cmp") or op.startswith("s_bitcmp"):
                self.rd = set().union(*[regs_of(o) for o in ops]); self.wr = {("scc", 0)}; return
            if op.startswith("s_load") or op.startswith("s_memtime") or op.startswith("s_memrealtime") or op.startswith("s_getreg"):
                self.kind = "smem"
                self.wr = regs_of(ops[0]); self.rd = set().union(*[regs_of(o) for o in ops[1:]]) if len(ops) > 1 else set(); return
            self.wr = regs_of(ops[0]); self.rd = set().union(*[regs_of(o) for o in ops[1:]])
            if "saveexec" in op: self.wr.add(("exec", 0)); self.rd.add(("exec", 0))
            return
        if op.startswith("v_"):
            self.kind = "valu"
            self.wr = regs_of(ops[0]); self.rd = set().union(*[regs_of(o) for o in ops[1:]]) if len(ops) > 1 else set()
            if base.startswith("v_cmp"):
                if "e32" in op or ops[0] == "vcc": self.wr = {("vcc", 0)}
            if base in ("v_cndmask_b32",) and len(ops) == 3: self.rd.add(("vcc", 0))
            if base in ("v_addc_co_u32", "v_subb_co_u32", "v_add_co_u32", "v_sub_co_u32", "v_subbrev_co_u32", "v_subrev_co_u32"):
                self.wr |= regs_of(ops[1]);
            if base.startswith("v_permlane") and "swap" in base:
                self.wr |= regs_of(ops[1]); self.rd |= regs_of(ops[0])
            if base in ("v_fmac_f32", "v_dot2c_f32_bf16", "v_mac_f32", "v_writelane_b32") or self.sdwa or self.dpp:
                self.rd |= regs_of(ops[0])
            return
        raise ValueError("unknown instr: " + text)

def is_trans(i): return i.kind == "valu" and re.sub(r"_(e32|e64)$", "", i.op) in TRANS
def is_dot(i): return i.kind == "valu" and i.op.startswith("v_dot")
def is_perm(i): return i.kind == "valu" and i.op.startswith("v_permlane")
def is_rl(i): return i.kind == "valu" and i.op.startswith(("v_readlane", "v_readfirstlane"))
def vg(rs): return {r for r in rs if r[0] in "va" and len(r[0]) == 1}
def sg(rs): return {r for r in rs if r[0] in ("s", "vcc")}

def need(p, c):
    n = 0
    if p.kind == "valu":
        psg = sg(p.wr)
        if psg:
            if c.kind == "vmem" and psg & c.rd: n = max(n, 5)
            if c.kind == "valu" and psg & c.rd: n = max(n, 4 if c.op.startswith(("v_readlane", "v_writelane")) else 2)
            if c.kind == "salu" and psg & c.rd: n = max(n, 1)
        pv = vg(p.wr)
        if pv:
            if c.kind == "valu" and c.dpp and pv & c.rd: n = max(n, 2)
            if is_perm(c) and pv & (c.rd | c.wr): n = max(n, 2)
            if is_rl(c) and pv & c.rd: n = max(n, 1)
            if c.kind == "mfma" and pv & c.rd: n = max(n, 2)
            if is_trans(p) and c.kind == "valu" and not is_trans(c) and pv & c.rd: n = max(n, 1)
            if is_trans(p) and c.kind in ("vmem", "ds") and pv & c.rd: n = max(n, 1)
            if (p.sdwa or ("op_sel" in p.text and not p.op.startswith("v_pk"))) and c.kind == "valu" and pv & (c.rd | c.wr): n = max(n, 1)
            if is_dot(p) and c.kind in ("valu", "mfma", "vmem", "ds") and pv & (c.rd | c.wr):
                if c.op == p.op:
                    toks = [o.strip() for o in re.split(r",(?![^\[]*\])", c.text.split(None, 1)[1])]
                    ab = regs_of(toks[1]) | regs_of(toks[2])
                    if pv & ab: n = max(n, 3)
                else: n = max(n, 3)
        if ("exec", 0) in p.wr:
            if c.kind == "valu" and c.dpp: n = max(n, 5)
            if c.kind == "mfma": n = max(n, 4)
    if p.kind == "salu" and ("m0", 0) in p.wr and c.lds_dma: n = max(n, 1)
    if p.kind == "vmem" and p.storedata and vg(c.wr) & p.storedata:
        n = max(n, 2 if c.kind == "valu" else 1)
    if p.kind == "mfma":
        P = p.passes
        t_ov = {4: 6, 8: 10, 16: 18}[P]; t_rw = {4: 8, 8: 12, 16: 20}[P]; t_war = {4: 3, 8: 7, 16: 15}[P]
        if c.kind == "mfma":
            toks = [o.strip() for o in re.split(r",(?![^\[]*\])", c.text.split(";")[0].split(None, 1)[1])]
            ab = regs_of(toks[1]) | regs_of(toks[2])
            if p.wr & ab: n = max(n, t_rw)
            if p.wr & c.srcc and not (p.wr == c.srcc and p.passes == c.passes): n = max(n, t_ov)
            if p.wr & c.wr and not (p.wr == c.wr and p.passes == c.passes): n = max(n, t_ov)
        else:
            if p.wr & (c.rd | c.wr): n = max(n, t_rw)
            if c.kind == "valu" and p.srcc & c.wr: n = max(n, t_war)
    return n

def unpack_pk(ln):
    t = ln.split(";")[0].strip()
    op, rest = t.split(None, 1)
    base = op[len("v_pk_"):]
    mods = {}
    for m in re.finditer(r"(op_sel_hi|op_sel|neg_lo|neg_hi):\[([01,]+)\]", rest):
        mods[m.group(1)] = [int(x) for x in m.group(2).split(",")]
    rest2 = re.sub(r"\s*(op_sel_hi|op_sel|neg_lo|neg_hi):\[[01,]+\]", "", rest)
    ops = [o.strip() for o in re.split(r",(?![^\[]*\])", rest2)]
    def pair(o):
        m = re.fullmatch(r"([vs])\[(\d+):(\d+)\]", o); assert m, o
        return m.group(1), int(m.group(2))
    n = len(ops) - 1
    sel = mods.get("op_sel", [0] * n); selh = mods.get("op_sel_hi", [1] * n)
    nl = mods.get("neg_lo", [0] * n); nh = mods.get("neg_hi", [0] * n)
    dk, d = pair(ops[0])
    def mk(dst, sl, ng):
        srcs = []; regs = set()
        for i in range(n):
            k, r = pair(ops[1 + i]); rr = r + sl[i]; regs.add((k, rr))
            srcs.append(("-" if ng[i] else "") + f"{k}{rr}")
        return f"v_{base} v{dst}, " + ", ".join(srcs), regs
    lo, rl = mk(d, sel, nl); hi, rh = mk(d + 1, selh, nh)
    if ("v", d) in rh:
        assert ("v", d + 1) not in rl, ln
        return [hi, lo]
    return [lo, hi]

class Asm:
    def __init__(self):
        import os
        self.unpk = os.environ.get("UNPK", "1") == "1"
        self.items = []
    def __call__(self, text):
        for ln in text.strip("\n").split("\n"):
            ln = ln.strip()
            if not ln: continue
            if ln.startswith(";"): self.items.append(("raw", "  " + ln)); continue
            if ln.endswith(":") or ln.startswith("."): self.items.append(("label" if ln.endswith(":") else "raw", ln)); continue
            if self.unpk and re.match(r"v_pk_(add|mul|fma)_f32\b", ln):
                for x in unpack_pk(ln): self.items.append(("ins", x))
                continue
            self.items.append(("ins", ln))
    def raw(self, text): self.items.append(("raw", text))
    def label(self, l): self.items.append(("label", l + ":"))
    def render(self):
        out = []; hist = []
        npad = 0
        for kind, text in self.items:
            if kind == "raw": out.append(text); continue
            if kind == "label":
                out.append(text)
                continue
            ins = Ins(text)
            req = 0; dist = 0
            for p in reversed(hist):
                if dist >= 20: break
                n = need(p, ins)
                if n > dist: req = max(req, n - dist)
                dist += p.states
            while req > 0:
                k = min(req, 16)
                nop = Ins(f"s_nop {k-1}"); out.append(f"  s_nop {k-1}"); hist.append(nop); req -= k; npad += 1
            out.append("  " + text); hist.append(ins)
            if len(hist) > 64: hist = hist[-32:]
            if ins.op in ("s_branch", "s_endpgm"): hist = []
        return "\n".join(out) + "\n"
```

```python
import sys, os
sys.path.insert(0, os.path.dirname(__file__))
from asmlib import *

NAME = "parallel_sum__ssm_conv_s4d__glu_gated_bilinear__prompt"
WS_EPOCH = 0x0
WS_F1    = 0x1000
WS_FC    = 0x2000
WS_STATS = 0x8000
WS_P     = 0x10000
WS_XNA   = 0x100000
WS_XNB   = 0x300000
WS_H     = 0x500000
WS_AO    = 0xB00000
WS_AOB   = 0xD00000
WS_DUMMY = 0x1000000
S_X, S_LOGA, S_AIM, S_CRE, S_CIM, S_LOGDT, S_DSK, S_BX = 16, 18, 20, 22, 24, 26, 28, 30
S_WG, S_WU, S_WD, S_OUT, S_DBG, S_WS = 32, 34, 36, 38, 40, 42
S_ONES = 44
S_WAVE = 45
S_J = 46

def prologue(a):
    a(f"""
    s_load_dwordx16 s[16:31], s[0:1], 0
    s_load_dwordx8 s[32:39], s[0:1], 64
    s_load_dwordx4 s[40:43], s[0:1], 96
    s_mov_b32 s{S_ONES}, 0x3f803f80
    v_lshrrev_b32 v2, 6, v0
    v_and_b32 v1, 63, v0
    v_readfirstlane_b32 s{S_WAVE}, v2
    """)

WS_STAMP = 0x8000000
STAMPS = False
class Stamper:
    def __init__(self): self.n = 0; self.names = []
ST = Stamper()
def stamp(a, name=""):
    if not STAMPS: return
    if ST.n >= 15: raise ValueError("too many stamps")
    op = "s_memrealtime" if name.startswith("RT") else "s_memtime"
    a(f"{op} s[{70+2*ST.n}:{71+2*ST.n}]")
    ST.names.append(name); ST.n += 1
def dump_stamps(a, launch_idx):
    if not STAMPS: return
    n = ST.n
    a("s_waitcnt lgkmcnt(0) vmcnt(0)")
    for i in range(2 * n):
        a(f"v_writelane_b32 v2, s{70+i}, {i}")
    a(f"s_add_u32 s48, s{S_WS}, {WS_STAMP + launch_idx * 0x100000:#x}")
    a(f"s_addc_u32 s49, s{S_WS+1}, 0")
    a(f"s_lshl_b32 s3, s2, 2")
    a(f"s_add_u32 s3, s3, s{S_WAVE}")
    a(f"s_lshl_b32 s3, s3, 7")
    a(f"v_lshlrev_b32 v3, 2, v1")
    a(f"v_add_u32 v3, s3, v3")
    a(f"s_mov_b64 exec, 0xffffffff")
    a(f"global_store_dword v3, v2, s[48:49]")
    a(f"s_mov_b64 exec, -1")
    print("stamps launch", launch_idx, ST.names)
    ST.n = 0; ST.names = []

def ws_base(a, dst, off):
    a(f"s_add_u32 s{dst}, s{S_WS}, {off:#x}")
    a(f"s_addc_u32 s{dst+1}, s{S_WS+1}, 0")

def wave_allreduce(a, regs, tmp):
    for pat in ("quad_perm:[1,0,3,2]", "quad_perm:[2,3,0,1]", "row_half_mirror", "row_mirror"):
        for r in regs:
            a(f"v_add_f32_dpp v{r}, v{r}, v{r} {pat} row_mask:0xf bank_mask:0xf")
    for sw in ("v_permlane16_swap_b32", "v_permlane32_swap_b32"):
        for r, t in zip(regs, tmp): a(f"v_mov_b32 v{t}, v{r}")
        for r, t in zip(regs, tmp): a(f"{sw} v{r}, v{t}")
        for r, t in zip(regs, tmp): a(f"v_add_f32 v{r}, v{r}, v{t}")

def ln_role(a, fused=False):
    X0, X1 = 4, 8
    SUM = [12, 13, 14, 15]; TMP = [16, 17, 18, 19]
    F0, F1 = 20, 28
    a(f"""
    s_lshl_b32 s3, s{S_J}, 3
    s_lshl_b32 s4, s{S_WAVE}, 1
    s_add_u32 s3, s3, s4              ; row0
    s_lshl_b32 s4, s3, 10
    v_lshlrev_b32 v3, 4, v1
    v_add_u32 v3, s4, v3
    s_waitcnt lgkmcnt(0)
    global_load_dwordx4 v[{X0}:{X0+3}], v3, s[{S_X}:{S_X+1}]
    global_load_dwordx4 v[{X1}:{X1+3}], v3, s[{S_X}:{S_X+1}] offset:1024
    """)
    a("s_waitcnt vmcnt(0)")
    stamp(a, "xload")
    for k in range(4):
        for (X, sm) in ((X0, 12), (X1, 14)):
            c = "0" if k == 0 else f"v{sm}"
            a(f"v_dot2_f32_bf16 v{sm}, v{X+k}, s{S_ONES}, {c}")
            c = "0" if k == 0 else f"v{sm+1}"
            a(f"v_dot2_f32_bf16 v{sm+1}, v{X+k}, v{X+k}, {c}")
    for (X, F) in ((X0, F0), (X1, F1)):
        for k in range(4):
            a(f"v_lshlrev_b32 v{F+2*k}, 16, v{X+k}")
            a(f"v_and_b32 v{F+2*k+1}, 0xffff0000, v{X+k}")
    wave_allreduce(a, SUM, TMP)
    M = [36, 37]; RS = [38, 39]
    for r, sm in enumerate((12, 14)):
        a(f"v_mul_f32 v{sm}, 0x3b000000, v{sm}")
        a(f"v_mul_f32 v{sm+1}, 0x3b000000, v{sm+1}")
    for r, sm in enumerate((12, 14)):
        a(f"v_fma_f32 v{sm+1}, -v{sm}, v{sm}, v{sm+1}")
        a(f"v_cvt_pk_bf16_f32 v{M[r]}, v{sm}, v{sm+1}")
    for r, sm in enumerate((12, 14)):
        a(f"v_and_b32 v{sm+1}, 0xffff0000, v{M[r]}")
        a(f"v_lshlrev_b32 v{M[r]}, 16, v{M[r]}")
        a(f"v_add_f32 v{sm+1}, 0x3727c5ac, v{sm+1}")
    for r, sm in enumerate((12, 14)):
        a(f"v_cvt_pk_bf16_f32 v{sm+1}, v{sm+1}, v{sm+1}")
    for r, sm in enumerate((12, 14)):
        a(f"v_lshlrev_b32 v{sm+1}, 16, v{sm+1}")
    for r, sm in enumerate((12, 14)):
        a(f"v_sqrt_f32 v{sm+1}, v{sm+1}")
    for r, sm in enumerate((12, 14)):
        a(f"v_cvt_pk_bf16_f32 v{sm+1}, v{sm+1}, v{sm+1}")
    for r, sm in enumerate((12, 14)):
        a(f"v_lshlrev_b32 v{sm+1}, 16, v{sm+1}")
    for r, sm in enumerate((12, 14)):
        a(f"v_rcp_f32 v{RS[r]}, v{sm+1}")
    for r, (F, X) in enumerate(((F0, X0), (F1, X1))):
        for k in range(8):
            a(f"v_sub_f32 v{F+k}, v{F+k}, v{M[r]}")
        for k in range(4):
            a(f"v_cvt_pk_bf16_f32 v{X+k}, v{F+2*k}, v{F+2*k+1}")
        for k in range(4):
            a(f"v_lshlrev_b32 v{F+2*k}, 16, v{X+k}")
            a(f"v_and_b32 v{F+2*k+1}, 0xffff0000, v{X+k}")
        for k in range(8):
            a(f"v_mul_f32 v{F+k}, v{F+k}, v{RS[r]}")
        for k in range(4):
            a(f"v_cvt_pk_bf16_f32 v{X+k}, v{F+2*k}, v{F+2*k+1}")
    a(f"""
    s_mul_i32 s4, s{S_WAVE}, {2*1088}
    v_lshlrev_b32 v3, 4, v1
    v_add_u32 v3, s4, v3
    ds_write_b128 v3, v[{X0}:{X0+3}]
    ds_write_b128 v3, v[{X1}:{X1+3}] offset:1088
    """)
    ws_base(a, 48, WS_STATS)
    a(f"""
    v_mov_b32 v40, v{M[0]}
    v_mov_b32 v41, v{RS[0]}
    v_mov_b32 v42, v{M[1]}
    v_mov_b32 v43, v{RS[1]}
    s_lshl_b32 s4, s3, 3
    v_mov_b32 v44, s4
    v_cmp_eq_u32 vcc, 0, v1
    s_and_saveexec_b64 s[50:51], vcc
    global_store_dwordx4 v44, v[40:43], s[48:49] sc1
    s_mov_b64 exec, s[50:51]
    s_waitcnt lgkmcnt(0)
    s_barrier
    """)
    a(f"""
    v_bfe_u32 v4, v1, 2, 2            ; r
    v_mul_u32_u24 v4, 1088, v4
    v_lshrrev_b32 v5, 4, v1           ; G
    v_lshlrev_b32 v5, 5, v5           ; 16G*2
    v_and_b32 v6, 3, v1
    v_lshlrev_b32 v6, 3, v6           ; 4c*2
    v_add3_u32 v4, v4, v5, v6
    s_lshl_b32 s4, s{S_WAVE}, 8       ; 128w*2
    v_add_u32 v4, s4, v4
    ds_read_b64_tr_b16 v[8:9], v4
    ds_read_b64_tr_b16 v[10:11], v4 offset:{4*1088}
    ds_read_b64_tr_b16 v[12:13], v4 offset:128
    ds_read_b64_tr_b16 v[14:15], v4 offset:{4*1088+128}
    """)
    ws_base(a, 48, WS_XNB)
    a(f"""
    s_lshl_b32 s4, s{S_J}, 13
    s_lshl_b32 s5, s{S_WAVE}, 11      ; 128w*16
    s_add_u32 s4, s4, s5
    v_lshlrev_b32 v5, 4, v1
    v_add_u32 v5, s4, v5
    s_waitcnt lgkmcnt(2)
    global_store_dwordx4 v5, v[8:11], s[48:49] sc1
    s_waitcnt lgkmcnt(0)
    global_store_dwordx4 v5, v[12:15], s[48:49] offset:1024 sc1
    """)

def kernel_header(a, label):
    a.raw(f".globl {label}")
    a.raw(".p2align 8")
    a.raw(f".type {label},@function")
    a.label(label)

def kernel_desc(label, vgpr=256):
    return f""".p2align 6
.amdhsa_kernel {label}
  .amdhsa_next_free_vgpr {vgpr}
  .amdhsa_next_free_sgpr 102
  .amdhsa_accum_offset {vgpr}
  .amdhsa_group_segment_fixed_size 0
  .amdhsa_kernarg_size 112
  .amdhsa_user_sgpr_count 2
  .amdhsa_user_sgpr_kernarg_segment_ptr 1
  .amdhsa_system_sgpr_workgroup_id_x 1
.end_amdhsa_kernel
"""

def exit_if_ge(a, n, lab):
    a(f"s_cmp_ge_u32 s2, {n}")
    a(f"s_cbranch_scc1 {lab}")

def build_multi(stages):
    a = Asm()
    head = "".join(f"; @launch kernel={lab} grid=({g},1,1) block=(256,1,1) lds={lds}\n" for lab, g, lds, fn in stages)
    a.raw('.amdgcn_target "amdgcn-amd-amdhsa--gfx950"')
    a.raw(".text")
    for li, (lab, g, lds, fn) in enumerate(stages):
        kernel_header(a, lab)
        exit_if_ge(a, g, f"L_exit2_{lab}")
        stamp(a, "RTstart"); stamp(a, "start")
        prologue(a)
        a(f"s_mov_b32 s{S_J}, s2")
        rep = int(os.environ.get("REP", "1"))
        if rep > 1:
            a("s_mov_b32 s100, 0")
            a.label(f"L_rep_{lab}")
            a("s_barrier")
            ST.n = 1; ST.names = ST.names[:1]
            stamp(a, "start")
        fn(a)
        a.label(f"L_exit_{lab}")
        if rep > 1:
            a("s_waitcnt vmcnt(0) lgkmcnt(0)")
            a("s_add_u32 s100, s100, 1")
            a(f"s_cmp_lt_u32 s100, {rep}")
            a(f"s_cbranch_scc1 L_rep_{lab}")
        stamp(a, "end"); stamp(a, "RTend")
        dump_stamps(a, li)
        a.label(f"L_exit2_{lab}")
        a("s_endpgm")
    body = a.render()
    tail = '.section .rodata,"a"\n' + "".join(kernel_desc(lab) for lab, g, lds, fn in stages)
    return head + body + tail

if __name__ == "__main__":
    import roles, gen
    if os.environ.get("STAMPS"): gen.STAMPS = True
    which = sys.argv[1] if len(sys.argv) > 1 else "multi"
    src = roles.build(which)
    out = sys.argv[2] if len(sys.argv) > 2 else f"cdna_kernels/{NAME}.s"
    open(out, "w").write(src)
    print("wrote", out, len(src), "bytes")
```

```python
import os
from gen import *
import gen
from ssm import KC, KCS, KCH, UB, UCH, RED, TABCH, TABB, TROW, XCH, L2E_HI, INV2PI, cmul, exp_bf16, A_ROWS
import ssm2
from ssm2 import PRM, EPV, sCH, sMH, sDT, sD
ENV = lambda k, d=None: os.environ.get(k, d)

LNB = XCH
S_JL = 47
UA, UAD = 192, 184
XNP, STV, VXA, VSA, VPF, VPA = 224, 232, 236, 237, 238, 239
S_UOK = 64

def ln_part(a, K):
    S_TAG = K.S_TAG
    X0, X1 = 4, 8
    SUM = [12, 13, 14, 15]; TMP = [16, 17, 18, 19]
    F0, F1 = 20, 28
    for k in range(4):
        for (X, sm) in ((X0, 12), (X1, 14)):
            c = "0" if k == 0 else f"v{sm}"
            a(f"v_dot2_f32_bf16 v{sm}, v{X+k}, s{S_ONES}, {c}")
            c = "0" if k == 0 else f"v{sm+1}"
            a(f"v_dot2_f32_bf16 v{sm+1}, v{X+k}, v{X+k}, {c}")
    for (X, F) in ((X0, F0), (X1, F1)):
        for k in range(4):
            a(f"v_lshlrev_b32 v{F+2*k}, 16, v{X+k}")
            a(f"v_and_b32 v{F+2*k+1}, 0xffff0000, v{X+k}")
    wave_allreduce(a, SUM, TMP)
    M = [36, 37]; RS = [38, 39]; MS = [STV, STV + 2]
    for r, sm in enumerate((12, 14)):
        a(f"v_mul_f32 v{sm}, 0x3b000000, v{sm}")
        a(f"v_mul_f32 v{sm+1}, 0x3b000000, v{sm+1}")
    for r, sm in enumerate((12, 14)):
        a(f"v_fma_f32 v{sm+1}, -v{sm}, v{sm}, v{sm+1}")
        a(f"v_cvt_pk_bf16_f32 v{M[r]}, v{sm}, v{sm+1}")
    for r, sm in enumerate((12, 14)):
        a(f"v_and_b32 v{sm+1}, 0xffff0000, v{M[r]}")
        a(f"v_lshlrev_b32 v{M[r]}, 16, v{M[r]}")
        a(f"v_add_f32 v{sm+1}, 0x3727c5ac, v{sm+1}")
    for r, sm in enumerate((12, 14)):
        a(f"v_cvt_pk_bf16_f32 v{sm+1}, v{sm+1}, v{sm+1}")
    for r, sm in enumerate((12, 14)):
        a(f"v_lshlrev_b32 v{sm+1}, 16, v{sm+1}")
    for r, sm in enumerate((12, 14)):
        a(f"v_sqrt_f32 v{sm+1}, v{sm+1}")
    for r, sm in enumerate((12, 14)):
        a(f"v_cvt_pk_bf16_f32 v{sm+1}, v{sm+1}, v{sm+1}")
    for r, sm in enumerate((12, 14)):
        a(f"v_lshlrev_b32 v{sm+1}, 16, v{sm+1}")
    for r, sm in enumerate((12, 14)):
        a(f"v_rcp_f32 v{RS[r]}, v{sm+1}")
        a(f"v_lshrrev_b32 v{MS[r]}, 16, v{M[r]}")
        a(f"v_or_b32 v{MS[r]}, v{MS[r]}, v{sm+1}")
    a("s_waitcnt vmcnt(4)")
    K.tag_compute(a, EPV)
    a(f"""
    s_lshl_b32 s4, s{S_JL}, 6
    s_lshl_b32 s5, s{S_WAVE}, 4
    s_add_u32 s4, s4, s5
    s_add_u32 s4, s4, {WS_STATS:#x}
    v_mov_b32 v{VSA}, s4
    v_xor_b32 v{MS[0]+1}, s{S_TAG}, v{MS[0]}
    v_xor_b32 v{MS[1]+1}, s{S_TAG}, v{MS[1]}
    """)
    stats_store(a)
    for r, (F, X) in enumerate(((F0, X0), (F1, X1))):
        for k in range(8):
            a(f"v_sub_f32 v{F+k}, v{F+k}, v{M[r]}")
        for k in range(4):
            a(f"v_cvt_pk_bf16_f32 v{X+k}, v{F+2*k}, v{F+2*k+1}")
        for k in range(4):
            a(f"v_lshlrev_b32 v{F+2*k}, 16, v{X+k}")
            a(f"v_and_b32 v{F+2*k+1}, 0xffff0000, v{X+k}")
        for k in range(8):
            a(f"v_mul_f32 v{F+k}, v{F+k}, v{RS[r]}")
        for k in range(4):
            a(f"v_cvt_pk_bf16_f32 v{X+k}, v{F+2*k}, v{F+2*k+1}")
    a(f"""
    s_mul_i32 s4, s{S_WAVE}, {2*1088}
    s_add_u32 s4, s4, {LNB}
    v_lshlrev_b32 v3, 4, v1
    v_add_u32 v3, s4, v3
    ds_write_b128 v3, v[{X0}:{X0+3}]
    ds_write_b128 v3, v[{X1}:{X1+3}] offset:1088
    v_bfe_u32 v4, v1, 2, 2            ; r
    v_mul_u32_u24 v4, 1088, v4
    v_lshrrev_b32 v5, 4, v1           ; G
    v_lshlrev_b32 v5, 5, v5           ; 16G*2
    v_and_b32 v6, 3, v1
    v_lshlrev_b32 v6, 3, v6           ; 4c*2
    v_add3_u32 v4, v4, v5, v6
    s_lshl_b32 s4, s{S_WAVE}, 8       ; 128w*2
    s_add_u32 s4, s4, {LNB}
    v_add_u32 v4, s4, v4
    s_lshl_b32 s4, s{S_JL}, 13
    s_lshl_b32 s5, s{S_WAVE}, 11      ; 128w*16
    s_add_u32 s4, s4, s5
    s_add_u32 s4, s4, {WS_XNA:#x}
    v_lshlrev_b32 v5, 4, v1
    v_add_u32 v{VXA}, s4, v5
    s_waitcnt lgkmcnt(0)
    s_barrier
    ds_read_b64_tr_b16 v[{XNP}:{XNP+1}], v4
    ds_read_b64_tr_b16 v[{XNP+2}:{XNP+3}], v4 offset:{4*1088}
    ds_read_b64_tr_b16 v[{XNP+4}:{XNP+5}], v4 offset:128
    ds_read_b64_tr_b16 v[{XNP+6}:{XNP+7}], v4 offset:{4*1088+128}
    """)

def stats_store(a):
    a(f"""
    s_mov_b64 exec, 1
    global_store_dwordx4 v{VSA}, v[{STV}:{STV+3}], s[{S_WS}:{S_WS+1}] sc1
    s_mov_b64 exec, -1""")

def xn_store_txt():
    return (f"s_waitcnt lgkmcnt(0)\n"
            f"global_store_dwordx4 v{VXA}, v[{XNP}:{XNP+3}], s[{S_WS}:{S_WS+1}] sc1\n"
            f"global_store_dwordx4 v{VXA}, v[{XNP+4}:{XNP+7}], s[{S_WS}:{S_WS+1}] offset:1024 sc1")

def fln_flag(a, K):
    a(f"""
    s_waitcnt vmcnt(0)
    s_lshl_b32 s7, s{S_WAVE}, 8
    s_add_u32 s7, s7, s{S_JL}
    s_lshl_b32 s7, s7, {K.FSL}
    """)
    K.wave_flag_store(a, 7, K.WS_FLN, 242)

def u_addr(a, K):
    a(f"""
    s_lshl_b32 s5, s{sCH}, 6
    v_add_u32 v{UAD+1}, s5, v1
    v_lshrrev_b32 v{UAD}, 1, v{UAD+1}
    v_lshlrev_b32 v{UAD}, 13, v{UAD}
    v_and_b32 v{UAD+1}, 1, v{UAD+1}
    v_lshlrev_b32 v{UAD+1}, 4, v{UAD+1}
    s_lshl_b32 s4, s{S_J}, 5
    s_add_u32 s4, s4, {WS_XNA:#x}
    v_add3_u32 v{UAD}, v{UAD}, v{UAD+1}, s4
    v_add_u32 v{UAD+1}, 0x80000, v{UAD}
    v_add_u32 v{UAD+2}, 0x100000, v{UAD}
    v_add_u32 v{UAD+3}, 0x180000, v{UAD}
    s_lshr_b32 s4, s{S_J}, 6
    s_lshl_b32 s4, s4, 8
    s_lshl_b32 s5, s{sCH}, 5
    s_add_u32 s4, s4, s5
    v_and_b32 v{VPA}, 31, v1
    v_lshrrev_b32 v{VPF}, 5, v1
    v_lshl_add_u32 v{VPA}, v{VPF}, 6, v{VPA}
    v_add_u32 v{VPA}, s4, v{VPA}
    v_lshlrev_b32 v{VPA}, {K.FSL}, v{VPA}
    v_add_u32 v{VPA}, {K.WS_FLN:#x}, v{VPA}
    """)

def poll_loads(a):
    FSL = int(ENV("FSL", "4")); assert FSL <= 4
    a(f"global_load_dword v{VPF}, v{VPA}, s[{S_WS}:{S_WS+1}] sc1")
    a(f"global_load_dword v{VPF+2}, v{VPA}, s[{S_WS}:{S_WS+1}] offset:{128 << FSL} sc1")

def poll_cmp(a, K):
    a(f"v_cmp_ne_u32 vcc, s{K.S_TAG}, v{VPF}")
    a(f"v_cmp_ne_u32 s[4:5], s{K.S_TAG}, v{VPF+2}")
    a("s_or_b64 vcc, vcc, s[4:5]")

def u_loads(a):
    for q in range(4):
        a(f"global_load_dwordx4 v[{UA+4*q}:{UA+4*q+3}], v{UAD+q}, s[{S_WS}:{S_WS+1}] sc1")

def store_u(a):
    a(f"""
    s_lshl_b32 s5, s{sCH}, 6
    v_add_u32 v9, s5, v1
    v_lshrrev_b32 v8, 1, v9
    v_lshlrev_b32 v8, 4, v8
    v_and_b32 v9, 1, v9
    v_mul_u32_u24 v9, {UCH}, v9
    v_add_u32 v8, v8, v9
    v_add_u32 v8, {UB + 512}, v8
    """)
    for q in range(4):
        a(f"ds_write_b128 v8, v[{UA+4*q}:{UA+4*q+3}] offset:{q*1024}")

def zero_pads(a):
    a(f"""
    v_mov_b32 v8, 0
    v_mov_b32 v9, 0
    v_mov_b32 v10, 0
    v_mov_b32 v11, 0
    s_mul_i32 s4, s{sCH}, {UCH}
    s_add_u32 s4, s4, {UB}
    v_lshlrev_b32 v12, 4, v1
    v_add_u32 v13, 4096, v12
    v_cmp_gt_u32 vcc, 32, v1
    v_cndmask_b32 v12, v13, v12, vcc
    v_add_u32 v12, s4, v12
    s_mov_b32 exec_hi, 15
    ds_write_b128 v12, v[8:11]
    s_mov_b64 exec, -1
    """)

def kgen_tables(a, hooks):
    a(f"""
    s_lshl_b32 s5, s{sCH}, 4
    s_lshr_b32 s{sDT}, s{sDT}, s5
    s_lshl_b32 s{sDT}, s{sDT}, 16
    s_lshr_b32 s{sD}, s{sD}, s5
    s_lshl_b32 s{sD}, s{sD}, 16
    v_mov_b32 v8, s{sDT}
    """)
    exp_bf16(a, 8, 9, 10)
    for i, r in enumerate((4, 5, 6, 7)): a(f"v_lshlrev_b32 v{r}, 16, v{PRM+i}")
    exp_bf16(a, 4, 9, 10)
    W1, W8, W256, W2, W4, W16 = 16, 18, 20, 22, 24, 26
    C = 12
    a(f"""
    v_mul_f32 v14, v4, v8
    v_mul_f32 v14, {L2E_HI | 0x80000000:#x}, v14       ; -Are*dt*log2e
    v_mul_f32 v15, v5, v8
    v_mul_f32 v15, {INV2PI:#x}, v15
    v_add_f32 v8, v8, v8
    v_mul_f32 v{C}, v6, v8
    v_mul_f32 v{C+1}, v7, v8
    """)
    for (W, p) in ((W1, 1.0), (W8, 8.0), (W256, 256.0)):
        if p == 1.0:
            a(f"v_exp_f32 v9, v14"); a(f"v_cos_f32 v{W}, v15"); a(f"v_sin_f32 v{W+1}, v15")
        else:
            lit = {8.0: "0x41000000", 256.0: "0x43800000"}[p]
            a(f"v_mul_f32 v10, {lit}, v14"); a(f"v_mul_f32 v11, {lit}, v15")
            a(f"v_exp_f32 v9, v10"); a(f"v_cos_f32 v{W}, v11"); a(f"v_sin_f32 v{W+1}, v11")
        a(f"v_mul_f32 v{W}, v{W}, v9"); a(f"v_mul_f32 v{W+1}, v{W+1}, v9")
    cmul(a, W2, W1, W1); cmul(a, W16, W8, W8); cmul(a, W4, W2, W2)
    a(f"""
    s_mul_i32 s4, s{sCH}, {TABCH}
    s_lshl_b32 s5, s{sMH}, 8
    s_add_u32 s4, s4, s5
    v_lshlrev_b32 v3, 2, v1
    v_add_u32 v3, s4, v3
    """)
    pk = [28, 29, 30, 31]; pki = [0]
    def emitA(kap, x):
        t = pk[pki[0] % 4]; pki[0] += 1
        a(f"v_cvt_pk_bf16_f32 v{t}, v{x}, -v{x+1}")
        a(f"ds_write_b32 v3, v{t} offset:{A_ROWS[kap]*TROW}")
    def emitB(j, x):
        t = pk[pki[0] % 4]; pki[0] += 1
        a(f"v_cvt_pk_bf16_f32 v{t}, v{x}, v{x+1}")
        a(f"ds_write_b32 v3, v{t} offset:{TABB + j*TROW}")
    E = [32, 34, 36, 38]
    a(f"v_mov_b32 v{E[0]}, 1.0"); a(f"v_mov_b32 v{E[0]+1}, 0")
    emitB(0, E[0]); emitB(1, W8)
    prev = {0: E[0], 1: W8}
    R = {0: C}
    pool = iter(range(44, 100, 2))
    plan = [(1, 0, W1), (256, 0, W256), (2, 1, W1), (512, 256, W256), (3, 2, W1), (258, 256, W2), (4, 3, W1), (768, 512, W256),
            (5, 4, W1), (260, 256, W4), (6, 5, W1), (1024, 768, W256), (7, 6, W1), (262, 258, W4), (264, 256, W8), (1280, 1024, W256),
            (516, 512, W4), (520, 512, W8), (1536, 1280, W256), (772, 768, W4), (776, 768, W8), (1792, 1536, W256),
            (1032, 1024, W8), (1288, 1280, W8), (1544, 1536, W8), (1800, 1792, W8)]
    emitA(0, C)
    j = 2; pi = 0; it = 0
    while j < 32 or pi < len(plan):
        if j < 32:
            d = E[(j % 2) + 2 * ((j // 2) % 2)]
            cmul(a, d, prev[j % 2], W16)
            pend = (j, d); prev[j % 2] = d; j += 1
        else: pend = None
        outs = []
        for _ in range(1 if j < 32 else 4):
            if pi < len(plan):
                kap, src, w = plan[pi]; pi += 1
                d2 = next(pool); R[kap] = d2
                cmul(a, d2, R[src], w); outs.append((kap, d2))
        if pend: emitB(*pend)
        for kap, d2 in outs: emitA(kap, d2)
        it += 1
        for h in hooks.pop(it, ()): h()
    for k_ in sorted(hooks):
        for h in hooks[k_]: h()
    stamp(a, "tables")
    a(f"""
    v_and_b32 v4, 31, v1
    v_mul_u32_u24 v4, {TROW}, v4
    v_lshrrev_b32 v5, 5, v1
    v_lshlrev_b32 v5, 4, v5
    v_add3_u32 v4, v4, v5, s4
    s_waitcnt lgkmcnt(0)
    """)
    D = 32; FA, FB = 64, 96
    for tt in range(8):
        a(f"ds_read_b128 v[{FA+4*tt}:{FA+4*tt+3}], v4 offset:{tt*32}")
        a(f"ds_read_b128 v[{FB+4*tt}:{FB+4*tt+3}], v4 offset:{TABB + tt*32}")
    for tt in range(8):
        a(f"s_waitcnt lgkmcnt({min(15, 2*(7-tt))})")
        c = "0" if tt == 0 else f"v[{D}:{D+15}]"
        a(f"v_mfma_f32_32x32x16_bf16 v[{D}:{D+15}], v[{FA+4*tt}:{FA+4*tt+3}], v[{FB+4*tt}:{FB+4*tt+3}], {c}")

def kgen_rest(a, K, hook_b1=None):
    D = 32
    a(f"""
    s_lshl_b32 s4, s{sCH}, 12
    s_add_u32 s4, s4, {XCH}
    v_lshlrev_b32 v3, 4, v1
    v_add_u32 v3, s4, v3
    s_cmp_eq_u32 s{sMH}, 0
    s_cbranch_scc1 L_kg_a
    """)
    for g in range(4):
        a(f"ds_write_b128 v3, v[{D+4*g}:{D+4*g+3}] offset:{g*1024}")
    poll_loads(a)
    a.label("L_kg_a")
    if hook_b1: hook_b1()
    a("s_waitcnt lgkmcnt(0)")
    a("s_barrier")
    a(f"s_cmp_eq_u32 s{sMH}, 0")
    a("s_cbranch_scc1 L_kg_m0")
    a("s_waitcnt vmcnt(0)")
    poll_cmp(a, K)
    a(f"s_mov_b32 s{S_UOK}, 0")
    a("s_cbranch_vccz L_kg_u1")
    if ENV("POLL2", "1") == "1":
        poll_loads(a)
        a("s_waitcnt vmcnt(0)")
        poll_cmp(a, K)
        a("s_cbranch_vccz L_kg_u1")
    a("s_branch L_kg_b")
    a.label("L_kg_u1")
    a(f"s_mov_b32 s{S_UOK}, 1")
    u_loads(a)
    a("s_branch L_kg_b")
    a.label("L_kg_m0")
    for g in range(4):
        a(f"ds_read_b128 v[{64+4*g}:{64+4*g+3}], v3 offset:{g*1024}")
    a(f"""
    s_mul_i32 s4, s{sCH}, {KCH}
    s_add_u32 s4, s4, {KC + 4112 - 512*7}
    v_and_b32 v4, 31, v1
    v_lshlrev_b32 v4, 4, v4
    v_sub_u32 v4, s4, v4
    v_and_b32 v5, 1, v1
    v_cmp_eq_u32 vcc, 1, v5
    """)
    a("s_waitcnt lgkmcnt(0)")
    for i in range(0, 16, 2):
        a(f"v_pk_add_f32 v[{D+i}:{D+i+1}], v[{D+i}:{D+i+1}], v[{64+i}:{64+i+1}]")
    def blk(b, vals, P):
        for k, (lo, hi) in enumerate(vals):
            a(f"v_cvt_pk_bf16_f32 v{P+k}, v{lo}, v{hi}")
        a(f"ds_write_b128 v4, v[{P}:{P+3}] offset:{512*(7-b)}")
    d = lambda i: D + i
    for bb in range(4):
        a(f"v_cndmask_b32 v{80+bb}, v{d(3+2*bb)}, v{d(4+2*bb)}, vcc")
    a("s_mov_b32 exec_lo, -1")
    a("s_mov_b32 exec_hi, 0")
    blk(0, [(d(7), d(6)), (d(5), d(4)), (d(3), d(2)), (d(1), d(0))], 64)
    blk(1, [(d(12), d(11)), (d(10), d(10)), (d(10), d(9)), (d(8), d(8))], 68)
    blk(2, [(d(15), d(15)), (d(14), d(14)), (d(14), d(13)), (d(13), d(13))], 72)
    a("s_mov_b32 exec_lo, 0")
    a("s_mov_b32 exec_hi, -1")
    blk(3, [(d(2), d(2)), (d(1), d(1)), (d(1), d(0)), (d(0), d(0))], 64 + 20)
    for bb in range(4):
        L, H = d(3 + 2 * bb), d(4 + 2 * bb)
        blk(4 + bb, [(H, H), (H, 80 + bb), (L, L), (L, L)], 88 + 4 * bb)
    a("s_mov_b64 exec, -1")
    a(f"""
    v_mov_b32 v64, 0
    v_mov_b32 v65, 0
    v_mov_b32 v66, 0
    v_mov_b32 v67, 0
    s_mul_i32 s4, s{sCH}, {KCH}
    s_add_u32 s4, s4, {KC}
    v_lshlrev_b32 v4, 4, v1
    v_add_u32 v5, 4096, v4
    v_cmp_gt_u32 vcc, 2, v1
    v_cndmask_b32 v4, v5, v4, vcc
    v_add_u32 v4, s4, v4
    s_mov_b64 exec, 0xfffff
    ds_write_b128 v4, v[64:67]
    s_mov_b64 exec, -1
    """)
    zero_pads(a)
    a("s_waitcnt lgkmcnt(0)")
    a.label("L_kg_b")
    a("s_barrier")
    stamp(a, "copy0")
    a(f"""
    s_mul_i32 s4, s{sCH}, {KCH}
    s_lshl_b32 s5, s{sMH}, 10
    s_add_u32 s4, s4, s5
    s_add_u32 s4, s4, {KC}
    v_lshlrev_b32 v4, 4, v1
    v_add_u32 v4, s4, v4
    """)
    for ps in range(3):
        Wd = 64 + 24 * ps
        a(f"ds_read_b128 v[{Wd}:{Wd+3}], v4 offset:{ps*2048}")
        a(f"ds_read_b128 v[{Wd+4}:{Wd+7}], v4 offset:{ps*2048+16}")
    for ps in range(3):
        Wd = 64 + 24 * ps
        if ps == 2:
            a(f"s_cmp_eq_u32 s{sMH}, 0")
            a("s_cbranch_scc0 L_kg_c")
            a("s_mov_b64 exec, 0xfffff")
            a("s_waitcnt lgkmcnt(6)")
        else:
            a(f"s_waitcnt lgkmcnt({4 - 2*ps + 3*ps})")
        for k in range(4):
            a(f"v_alignbit_b32 v{Wd+8+k}, v{Wd+k+1}, v{Wd+k}, 16")
            a(f"v_mov_b32 v{Wd+12+k}, v{Wd+k+1}")
            a(f"v_alignbit_b32 v{Wd+16+k}, v{Wd+k+2}, v{Wd+k+1}, 16")
        for c in range(3):
            a(f"ds_write_b128 v4, v[{Wd+8+4*c}:{Wd+8+4*c+3}] offset:{ps*2048 + (c+1)*KCS}")
        if ps == 2:
            a("s_mov_b64 exec, -1")
            a("s_branch L_kg_e")
            a.label("L_kg_c")
    a(f"s_cmp_eq_u32 s{S_UOK}, 1")
    a("s_cbranch_scc1 L_kg_d")
    a("s_mov_b32 s6, 0")
    a.label("L_u_spin")
    poll_loads(a)
    a("s_add_u32 s6, s6, 1")
    a("s_waitcnt vmcnt(0)")
    poll_cmp(a, K)
    a(f"s_cmp_ge_u32 s6, {K.SPIN}")
    a("s_cbranch_scc1 L_u_go")
    a("s_cbranch_vccz L_u_go")
    a("s_sleep 2")
    a("s_branch L_u_spin")
    a.label("L_u_go")
    u_loads(a)
    a.label("L_kg_d")
    a("s_waitcnt vmcnt(0)")
    store_u(a)
    a.label("L_kg_e")

def conv(a, K):
    S_TAG = K.S_TAG
    sPAR = 61
    sAO, sAOB = 66, 68
    vF, vG, vF0, vG0 = 4, 5, 6, 7
    ACC = 8
    FS = [40, 104]; GS = [72, 136]
    a(f"""
    v_and_b32 v168, 15, v1            ; m / n
    v_lshrrev_b32 v169, 4, v1         ; q
    v_and_b32 v170, 3, v168
    v_sub_u32 v170, 3, v170
    v_mul_u32_u24 v170, {KCS}, v170
    v_lshrrev_b32 v171, 2, v168
    v_lshlrev_b32 v171, 3, v171
    v_sub_u32 v170, v170, v171
    v_lshl_add_u32 v170, v169, 4, v170
    s_mul_i32 s4, s{sCH}, {KCH}
    s_add_u32 s4, s4, {KC + 4120 - 4096}
    v_add_u32 v{vF0}, s4, v170
    s_lshl_b32 s5, s{sPAR}, 6
    v_subrev_u32 v{vF}, s5, v{vF0}
    v_lshlrev_b32 v170, 5, v168
    v_lshl_add_u32 v170, v169, 4, v170
    s_mul_i32 s4, s{sCH}, {UCH}
    s_add_u32 s4, s4, {UB}
    v_add_u32 v{vG0}, s4, v170
    v_subrev_u32 v{vG}, s5, v{vG0}
    """)
    def loads(k):
        F = FS[k % 2]; Gr = GS[k % 2]
        for i in range(8):
            off = 64 * (64 - 1 - 2 * k - 8 * i)
            a(f"ds_read_b128 v[{Gr+4*i}:{Gr+4*i+3}], v{vG} offset:{512*(i+1) - 64 - 128*k}")
            a(f"ds_read_b64 v[{F+4*i}:{F+4*i+1}], v{vF} offset:{off}")
            a(f"ds_read_b64 v[{F+4*i+2}:{F+4*i+3}], v{vF} offset:{off+8}")
    def mm(k):
        F = FS[k % 2]; Gr = GS[k % 2]
        for i in range(8):
            for aa in range(8 - i):
                t = i + aa; d = ACC + 4 * t
                c = "0" if (k == 0 and i == 0) else f"v[{d}:{d+3}]"
                a(f"v_mfma_f32_16x16x32_bf16 v[{d}:{d+3}], v[{F+4*i}:{F+4*i+3}], v[{Gr+4*aa}:{Gr+4*aa+3}], {c}")
    loads(0)
    for k in range(4):
        a("s_waitcnt lgkmcnt(0)")
        if k < 3: loads(k + 1)
        else:
            a(f"ds_read_b64 v[{FS[0]}:{FS[0]+1}], v{vF0} offset:4096")
            a(f"ds_read_b64 v[{FS[0]+2}:{FS[0]+3}], v{vF0} offset:{4096+8}")
            a(f"s_lshl_b32 s5, s{sPAR}, 11")
            a(f"v_add_u32 v{vG}, s5, v{vG0}")
            for tt in range(4):
                a(f"ds_read_b128 v[{GS[0]+4*tt}:{GS[0]+4*tt+3}], v{vG} offset:{512*(tt+1)}")
        mm(k)
    a("s_waitcnt lgkmcnt(0)")
    stamp(a, "convloop")
    ws_base(a, sAO, WS_AO)
    a(f"s_cmp_eq_u32 s{sPAR}, 0")
    a("s_cbranch_scc0 L_cv_p1")
    def finish(par):
        for tt in range(4):
            d = ACC + 4 * (4 * par + tt)
            a(f"v_mfma_f32_16x16x32_bf16 v[{d}:{d+3}], v[{FS[0]}:{FS[0]+3}], v[{GS[0]+4*tt}:{GS[0]+4*tt+3}], v[{d}:{d+3}]")
        a(f"""
        s_lshl_b32 s4, s{S_WAVE}, 12
        s_add_u32 s4, s4, {RED}
        v_lshlrev_b32 v170, 4, v1
        v_add_u32 v171, s4, v170
        s_xor_b32 s4, s{S_WAVE}, 1
        s_lshl_b32 s4, s4, 12
        s_add_u32 s4, s4, {RED}
        v_add_u32 v170, s4, v170
        """)
        for tt in range(4):
            d = ACC + 4 * (4 * (1 - par) + tt)
            a(f"ds_write_b128 v171, v[{d}:{d+3}] offset:{tt*1024}")
        a(f"""
        v_lshlrev_b32 v172, 5, v168
        v_lshl_add_u32 v172, v169, 3, v172
        s_mul_i32 s4, s{sCH}, {UCH}
        s_add_u32 s4, s4, {UB + 512 + par*2048}
        v_add_u32 v173, s4, v172
        """)
        for tt in range(4):
            a(f"ds_read_b64 v[{72+2*tt}:{72+2*tt+1}], v173 offset:{tt*512}")
        a("s_waitcnt lgkmcnt(0)")
        a("s_barrier")
        for tt in range(4):
            a(f"ds_read_b128 v[{40+4*tt}:{40+4*tt+3}], v170 offset:{tt*1024}")
        a(f"""
        s_lshl_b32 s4, s{S_J}, 1
        s_add_u32 s4, s4, s{sCH}
        s_lshl_b32 s4, s4, 12
        s_add_u32 s4, s4, {par*2048}
        v_add_u32 v172, s4, v172
        """)
        for tt in range(4):
            u = 72 + 2 * tt; T = 80 + 8 * tt
            for h2 in range(2):
                a(f"v_lshlrev_b32 v{T+2*h2}, 16, v{u+h2}")
                a(f"v_and_b32 v{T+2*h2+1}, 0xffff0000, v{u+h2}")
            for e in range(4):
                a(f"v_mul_f32 v{T+e}, s{sD}, v{T+e}")
            a(f"v_cvt_pk_bf16_f32 v{T+4}, v{T}, v{T+1}")
            a(f"v_cvt_pk_bf16_f32 v{T+5}, v{T+2}, v{T+3}")
            for h2 in range(2):
                a(f"v_lshlrev_b32 v{T+2*h2}, 16, v{T+4+h2}")
                a(f"v_and_b32 v{T+2*h2+1}, 0xffff0000, v{T+4+h2}")
        for tt in range(4):
            d = ACC + 4 * (4 * par + tt); p = 40 + 4 * tt; T = 80 + 8 * tt
            a(f"s_waitcnt lgkmcnt({3 - tt})")
            a(f"v_pk_add_f32 v[{d}:{d+1}], v[{d}:{d+1}], v[{p}:{p+1}]")
            a(f"v_pk_add_f32 v[{d+2}:{d+3}], v[{d+2}:{d+3}], v[{p+2}:{p+3}]")
            a(f"v_cvt_pk_bf16_f32 v{p}, v{d}, v{d+1}")
            a(f"v_cvt_pk_bf16_f32 v{p+1}, v{d+2}, v{d+3}")
            for h2 in range(2):
                a(f"v_lshlrev_b32 v{d+2*h2}, 16, v{p+h2}")
                a(f"v_and_b32 v{d+2*h2+1}, 0xffff0000, v{p+h2}")
            a(f"v_pk_add_f32 v[{d}:{d+1}], v[{d}:{d+1}], v[{T}:{T+1}]")
            a(f"v_pk_add_f32 v[{d+2}:{d+3}], v[{d+2}:{d+3}], v[{T+2}:{T+3}]")
            a(f"v_cvt_pk_bf16_f32 v{p+2}, v{d}, v{d+1}")
            a(f"v_cvt_pk_bf16_f32 v{p+3}, v{d+2}, v{d+3}")
            a(f"global_store_dwordx2 v172, v[{p+2}:{p+3}], s[{sAO}:{sAO+1}] offset:{tt*512} sc1")
    finish(0)
    a("s_branch L_cv_end")
    a.label("L_cv_p1")
    finish(1)
    a.label("L_cv_end")
    stamp(a, "ao_st")
    a("s_waitcnt vmcnt(0)")
    a(f"s_lshl_b32 s7, s{S_J}, 2")
    a(f"s_add_u32 s7, s7, s{S_WAVE}")
    a(f"s_lshl_b32 s7, s7, {K.FSY}")
    K.wave_flag_store(a, 7, K.WS_FY, 170)

def ssm_role(a, K):
    S_TAG = K.S_TAG
    a(f"""
    s_setprio {ENV("PRIO_S", "3")}
    s_and_b32 s3, s{S_J}, 7
    s_lshr_b32 s4, s{S_J}, 3
    s_lshl_b32 s3, s3, 5
    s_add_u32 s{S_J}, s3, s4
    s_mov_b32 s{S_JL}, s{S_J}
    """)
    a(f"""
    s_lshl_b32 s3, s{S_JL}, 13
    s_lshl_b32 s4, s{S_WAVE}, 11
    s_add_u32 s3, s3, s4              ; row0*1024
    v_lshlrev_b32 v3, 4, v1
    v_add_u32 v3, s3, v3
    s_lshr_b32 s{sCH}, s{S_WAVE}, 1
    s_and_b32 s{sMH}, s{S_WAVE}, 1
    s_lshl_b32 s4, s{S_J}, 1
    s_add_u32 s4, s4, s{sCH}
    s_lshl_b32 s4, s4, 8
    s_lshl_b32 s5, s{sMH}, 7
    s_add_u32 s4, s4, s5
    v_lshlrev_b32 v12, 1, v1
    v_add_u32 v12, s4, v12
    v_mov_b32 v13, 0
    s_lshl_b32 s3, s{S_J}, 2
    s_waitcnt lgkmcnt(0)
    global_load_dwordx4 v[4:7], v3, s[{S_X}:{S_X+1}]
    global_load_dwordx4 v[8:11], v3, s[{S_X}:{S_X+1}] offset:1024
    global_load_dword v{EPV}, v13, s[{S_WS}:{S_WS+1}] sc1
    global_load_ushort v{PRM}, v12, s[{S_LOGA}:{S_LOGA+1}]
    global_load_ushort v{PRM+1}, v12, s[{S_AIM}:{S_AIM+1}]
    global_load_ushort v{PRM+2}, v12, s[{S_CRE}:{S_CRE+1}]
    global_load_ushort v{PRM+3}, v12, s[{S_CIM}:{S_CIM+1}]
    s_load_dword s{sDT}, s[{S_LOGDT}:{S_LOGDT+1}], s3
    s_load_dword s{sD}, s[{S_DSK}:{S_DSK+1}], s3
    """)
    u_addr(a, K)
    a("s_waitcnt vmcnt(5)")
    stamp(a, "xload")
    ln_part(a, K)
    XN_IT = int(ENV("XN_IT", "0")); FLN_IT = int(ENV("FLN_IT", "20"))
    nst = 1
    if XN_IT == 0:
        a(xn_store_txt()); nst += 2
    stamp(a, "ln")
    if ENV("EXIT_LN"): a("s_branch L_done")
    a(f"s_setprio {ENV('PRIO_K', ENV('PRIO_S', '3'))}")
    a(f"s_waitcnt vmcnt({nst})")
    hooks = {}
    if XN_IT > 0: hooks.setdefault(XN_IT, []).append(lambda: a(xn_store_txt()))
    hb1 = None
    if FLN_IT <= 40: hooks.setdefault(FLN_IT, []).append(lambda: fln_flag(a, K))
    else: hb1 = lambda: fln_flag(a, K)
    kgen_tables(a, hooks)
    stamp(a, "kmfma")
    kgen_rest(a, K, hb1)
    stamp(a, "kgen_end")
    if ENV("EXIT_KG"): a("s_branch L_done")
    a("s_waitcnt lgkmcnt(0)")
    a("s_barrier")
    stamp(a, "u_done")
    a(f"s_setprio {ENV('PRIO_C', '3')}")
    conv(a, K)
    stamp(a, "conv_end")
    a(f"""
    s_cmp_eq_u32 s{S_J}, 0
    s_cbranch_scc0 L_done
    v_lshlrev_b32 v208, {K.FSH + 2}, v0
    v_add_u32 v204, {K.WS_FH:#x}, v208
    v_add_u32 v205, {1 << K.FSH}, v204
    v_add_u32 v206, {2 << K.FSH}, v204
    v_add_u32 v207, {3 << K.FSH}, v204
    global_load_dword v200, v204, s[{S_WS}:{S_WS+1}] sc1
    global_load_dword v201, v205, s[{S_WS}:{S_WS+1}] sc1
    global_load_dword v202, v206, s[{S_WS}:{S_WS+1}] sc1
    global_load_dword v203, v207, s[{S_WS}:{S_WS+1}] sc1
    s_waitcnt vmcnt(0)
    """)
    K.spin_check(a, [204, 205, 206, 207], [200, 201, 202, 203], "L_ce")
    a(f"""
    s_barrier
    s_cmp_eq_u32 s{S_WAVE}, 0
    s_cbranch_scc0 L_done
    v_add_u32 v209, 1, v{EPV}
    v_mov_b32 v208, 0
    s_mov_b64 exec, 1
    global_store_dword v208, v209, s[{S_WS}:{S_WS+1}] sc1
    s_mov_b64 exec, -1
    """)
```

```python
import sys, os
sys.path.insert(0, os.path.dirname(__file__))
import gen
from gen import *

S_RB, S_CB, S_TAG, S_RT, S_CT = 47, 48, 49, 50, 51
ENV = lambda k, d=None: os.environ.get(k, d)
SPIN = int(ENV("SPIN", "20000"))
WS_FLN, WS_FH, WS_FY = 0x30000, 0x40000, 0x80000
FSH, FSY, FSL = int(ENV('FSH', '7')), int(ENV('FSY', '7')), int(ENV('FSL', '4'))

class VQ:
    def __init__(self): self.q = []
    def add(self, tag, counted=True):
        if ENV("NOW2") and isinstance(tag, tuple) and tag[0] == "W2": counted = False
        self.q.append((tag, counted))
    def after(self, tags):
        last = max(i for i, (t, c) in enumerate(self.q) if t in tags)
        n = sum(1 for (t, c) in self.q[last+1:] if c)
        return min(n, 63)

def epoch_issue(a, vdst, vtmp):
    a(f"v_mov_b32 v{vtmp}, 0")
    a(f"global_load_dword v{vdst}, v{vtmp}, s[{S_WS}:{S_WS+1}] sc1")

def tag_compute(a, vsrc):
    a(f"v_readfirstlane_b32 s{S_TAG}, v{vsrc}")
    a(f"s_mul_i32 s{S_TAG}, s{S_TAG}, 0x9E3779B1")
    a(f"s_add_u32 s{S_TAG}, s{S_TAG}, 0x7F4A7C15")
    a(f"s_or_b32 s{S_TAG}, s{S_TAG}, 1")

def flag_store(a, off_sreg, base, lab, vt):
    a(f"s_cmp_eq_u32 s{S_WAVE}, 0")
    a(f"s_cbranch_scc0 {lab}")
    wave_flag_store(a, off_sreg, base, vt)
    a.label(lab)

def wave_flag_store(a, off_sreg, base, vt):
    a(f"s_add_u32 s3, s{off_sreg}, {base:#x}")
    a(f"v_mov_b32 v{vt}, s3")
    a(f"v_mov_b32 v{vt+1}, s{S_TAG}")
    a("s_mov_b64 exec, 1")
    a(f"global_store_dword v{vt}, v{vt+1}, s[{S_WS}:{S_WS+1}] sc1")
    a("s_mov_b64 exec, -1")

def spin_check(a, vaddrs, vvals, lab):
    def cmp():
        a(f"v_cmp_ne_u32 vcc, s{S_TAG}, v{vvals[0]}")
        for v in vvals[1:]:
            a(f"v_cmp_ne_u32 s[4:5], s{S_TAG}, v{v}")
            a(f"s_or_b64 vcc, vcc, s[4:5]")
    cmp()
    a(f"s_cbranch_vccz {lab}_ok")
    a(f"s_mov_b32 s6, 0")
    a.label(f"{lab}_spin")
    a("s_sleep 2")
    for va, vv in zip(vaddrs, vvals):
        a(f"global_load_dword v{vv}, v{va}, s[{S_WS}:{S_WS+1}] sc1")
    a(f"s_add_u32 s6, s6, 1")
    a("s_waitcnt vmcnt(0)")
    cmp()
    a(f"s_cmp_ge_u32 s6, {SPIN}")
    a(f"s_cbranch_scc1 {lab}_ok")
    a(f"s_cbranch_vccnz {lab}_spin")
    a.label(f"{lab}_ok")

NS = 22; NSL = 10; HD = 9
SLOT = [0, 49152, 57344, 8192, 16384, 24576, 65536, 73728, 32768, 40960]
G2_SRDW, G2_SRDH = 52, 56
G2_sWoff, G2_sH0, G2_sLB, G2_sHoff = 62, 63, 64, 65
G2_vWo = [11, 12]
G2_vA, G2_vA2 = [8, 9], [4, 5]
WSL = [88, 96, 104, 112, 120, 128, 32, 40, 48, 140]
HRB = [148, 156, 164, 172, 180, 56, 64, 72, 80]
ACC2 = 192

def g2_setup_a(vT):
    return f"""s_lshl_b32 s3, s{S_CT}, 7
    s_add_u32 s{G2_SRDW}, s{S_WD}, s3
    s_addc_u32 s{G2_SRDW+1}, s{S_WD+1}, 0
    s_and_b32 s{G2_SRDW+1}, s{G2_SRDW+1}, 0xffff
    s_sub_u32 s{G2_SRDW+2}, {1376*1024}, s3
    s_mov_b32 s{G2_SRDW+3}, 0x20000
    s_mul_i32 s3, s{S_WAVE}, 22
    s_cmp_ge_u32 s{S_WAVE}, 2
    s_subb_u32 s3, s3, 0
    s_cmp_ge_u32 s{S_WAVE}, 3
    s_subb_u32 s3, s3, 0
    s_lshl_b32 s{G2_sWoff}, s3, 14
    s_lshl_b32 s{G2_sH0}, s3, 10
    s_lshl_b32 s{G2_sLB}, s{S_WAVE}, 11
    v_lshrrev_b32 v{vT}, 3, v1
    v_and_b32 v{vT+1}, 7, v1
    v_bfe_u32 v{vT+2}, v1, 4, 1
    v_lshlrev_b32 v{vT+2}, 2, v{vT+2}
    v_xor_b32 v{vT+1}, v{vT+1}, v{vT+2}
    v_lshlrev_b32 v{vT+1}, 4, v{vT+1}
    v_lshl_add_u32 v{G2_vWo[0]}, v{vT}, 10, v{vT+1}
    v_add_u32 v{G2_vWo[1]}, 8192, v{G2_vWo[0]}"""

def g2_setup_b(vT):
    vA, vA2 = G2_vA, G2_vA2
    return f"""v_bfe_u32 v{vT}, v1, 2, 2              ; r
    v_lshrrev_b32 v{vT+1}, 5, v1           ; hh
    v_lshl_add_u32 v{vT+1}, v{vT+1}, 2, v{vT}
    v_lshlrev_b32 v{vT+1}, 7, v{vT+1}
    v_bfe_u32 v{vT+2}, v1, 4, 1            ; mhalf
    v_lshlrev_b32 v{vT+2}, 5, v{vT+2}
    v_and_b32 v{vT+3}, 3, v1
    v_lshlrev_b32 v{vT+3}, 3, v{vT+3}
    v_add3_u32 v{vT+1}, v{vT+1}, v{vT+2}, v{vT+3}
    v_add_u32 v{vT+1}, s{G2_sLB}, v{vT+1}
    v_bfe_u32 v{vT+2}, v1, 3, 1
    v_lshlrev_b32 v{vT+2}, 6, v{vT+2}
    v_add_u32 v{vA[0]}, v{vT+1}, v{vT+2}
    v_xor_b32 v{vT+2}, 64, v{vT+2}
    v_add_u32 v{vA[1]}, v{vT+1}, v{vT+2}
    v_add_u32 v{vA2[0]}, 0x10000, v{vA[0]}
    v_add_u32 v{vA2[1]}, 0x10000, v{vA[1]}"""

def wdma_items(st):
    L = []
    if ENV("NOW2"): return [("s_nop 0", ("W2", st))]
    for ii in range(2):
        t = f"s_add_u32 m0, s{G2_sLB}, {SLOT[st % NSL] + ii * 1024}\nbuffer_load_dwordx4 v{G2_vWo[ii]}, s[{G2_SRDW}:{G2_SRDW+3}], s{G2_sWoff} offen lds"
        if ii == 1: t += f"\ns_add_u32 s{G2_sWoff}, s{G2_sWoff}, 16384"
        L.append((t, ("W2", st)))
    return L

def areg2(st):
    return WSL[st] if st < NSL else WSL[st % 2]

def wreads2(st):
    A = areg2(st); L = []
    so = SLOT[st % NSL]; va = G2_vA
    if so >= 65536: so -= 65536; va = G2_vA2
    for mt in range(2):
        L.append(f"ds_read_b64_tr_b16 v[{A+4*mt}:{A+4*mt+1}], v{va[mt]} offset:{so}")
        L.append(f"ds_read_b64_tr_b16 v[{A+4*mt+2}:{A+4*mt+3}], v{va[mt]} offset:{so + 1024}")
    return L

def wd_touch_addr(vdst):
    return f"""s_lshr_b32 s3, s{S_J}, 3
    s_mul_i32 s3, s3, 344
    s_mul_i32 s4, s{S_WAVE}, 86
    s_add_u32 s3, s3, s4
    s_lshl_b32 s3, s3, 7
    v_lshlrev_b32 v{vdst}, 7, v1
    v_add_u32 v{vdst}, s3, v{vdst}"""

def wd_touch(part, vaddr, vtmp, vdum):
    if part == 0: return f"global_load_dword v{vdum}, v{vaddr}, s[{S_WD}:{S_WD+1}]"
    return f"v_add_u32 v{vtmp}, {64*128}, v{vaddr}\ns_mov_b64 exec, 0x3fffff\nglobal_load_dword v{vdum}, v{vtmp}, s[{S_WD}:{S_WD+1}]\ns_mov_b64 exec, -1"

XL = 49152
def g1(a, q):
    SRDX, SRDW = 52, 56
    sWM, sWN, sXoff, sWoff, sMX, sMW = 60, 61, 62, 63, 64, 65
    sH, sH2 = 66, 68
    sCS, sFT0, sTS = 10, 11, 12
    vAad = [4, 5, 6]; vBad = [7, 8, 9, 10]; vXo = [11, 12, 13, 14]; vWo = [15, 16, 17]
    vST = [18, 20]; vFv, vHa, vEp = 23, 24, 25
    vT = 26
    vSa, vPa = 2, 3
    AF = [32, 44]; BF = [56, 88]; SEL = 120; ONES = 124; CD = 128; PF = 128
    CSV = [56, 72, 140]
    vTD, vDUM = 158, 159
    ACC = 160
    def acc(j, jn): return ACC + (j * 2 + jn) * 16
    a(f"""
    s_and_b32 s3, s{S_J}, 7            ; x
    s_lshr_b32 s4, s{S_J}, 3           ; y
    s_lshr_b32 s5, s3, 1               ; pr
    s_lshl_b32 s5, s5, 2
    s_and_b32 s6, s4, 3
    s_add_u32 s{S_RB}, s5, s6
    s_and_b32 s5, s3, 1
    s_lshl_b32 s5, s5, 3
    s_lshr_b32 s6, s4, 2
    s_add_u32 s{S_CB}, s5, s6
    s_lshl_b32 s5, s3, 2
    s_and_b32 s6, s4, 3
    s_add_u32 s{S_RT}, s5, s6          ; rt = 4x + (y&3)
    s_lshr_b32 s{S_CT}, s4, 2          ; ct = y>>2
    s_and_b32 s{sWM}, s{S_WAVE}, 1
    s_lshr_b32 s{sWN}, s{S_WAVE}, 1
    s_setprio {ENV("PRIO_G", "2")}
    """)
    a(f"""
    v_lshrrev_b32 v{vT}, 3, v1             ; r
    v_and_b32 v{vT+1}, 7, v1               ; p
    v_lshrrev_b32 v{vT+2}, 1, v{vT}        ; r>>1
    v_xor_b32 v{vT+3}, v{vT+1}, v{vT+2}    ; p ^ (r>>1)
    v_lshlrev_b32 v{vT+4}, 10, v{vT}       ; r*1024
    s_lshl_b32 s3, s{S_WAVE}, 15           ; w*4*8192
    v_add_u32 v{vT+4}, s3, v{vT+4}
    """)
    for ii in range(4):
        a(f"v_xor_b32 v{vT+5}, {4*(ii&1)}, v{vT+3}")
        a(f"v_lshl_add_u32 v{vXo[ii]}, v{vT+5}, 4, v{vT+4}")
        if ii > 0: a(f"v_add_u32 v{vXo[ii]}, {ii*8192}, v{vXo[ii]}")
    a(f"s_lshl_b32 s3, s{sWM}, 1")
    a(f"s_mul_i32 s4, s{sWN}, {16*2752}")
    for i in range(3):
        a(f"""
        v_add_u32 v{vT}, {64*i}, v1
        v_mul_u32_u24 v{vT+1}, 0x5556, v{vT}
        v_lshrrev_b32 v{vT+1}, 18, v{vT+1}      ; row = u/12
        v_mul_u32_u24 v{vT+2}, 12, v{vT+1}
        v_sub_u32 v{vT+2}, v{vT}, v{vT+2}       ; pos
        v_xor_b32 v{vT+2}, s3, v{vT+2}
        v_lshlrev_b32 v{vT+2}, 4, v{vT+2}
        v_mul_u32_u24 v{vT+1}, 2752, v{vT+1}
        v_add3_u32 v{vWo[i]}, v{vT+1}, v{vT+2}, s4
        """)
    rm = ENV("ROT", "cbpr")
    ROTX = {"cbpr": f"s_lshr_b32 s5, s{S_RB}, 2\n s_lshl_b32 s5, s5, 1\n s_add_u32 s5, s5, s{S_CB}\n s_and_b32 s5, s5, 7",
            "pr": f"s_lshr_b32 s5, s{S_RB}, 2\n s_lshl_b32 s5, s5, 1",
            "none": "s_mov_b32 s5, 0",
            "rb": f"s_and_b32 s5, s{S_RB}, 7"}[rm]
    a(f"""
    {ROTX}
    s_lshl_b32 s{sXoff}, s5, 7
    s_mul_i32 s{sWoff}, s5, {64*2752}
    s_lshl_b32 s{sMX}, s{S_WAVE}, 12
    s_add_u32 s{sMX}, s{sMX}, {XL}
    s_mul_i32 s{sMW}, s{sWN}, 6144
    s_mul_i32 s3, s{sWM}, 3072
    s_add_u32 s{sMW}, s{sMW}, s3
    s_waitcnt lgkmcnt(0)
    s_lshl_b32 s3, s{S_RB}, 17
    s_add_u32 s{SRDX}, s{S_X}, s3
    s_addc_u32 s{SRDX+1}, s{S_X+1}, 0
    s_and_b32 s{SRDX+1}, s{SRDX+1}, 0xffff
    s_mov_b32 s{SRDX+2}, 0x20000
    s_mov_b32 s{SRDX+3}, 0x20000
    s_cmp_eq_u32 s{sWM}, 0
    s_cselect_b32 s{SRDW}, s{S_WG}, s{S_WU}
    s_cselect_b32 s{SRDW+1}, s{S_WG+1}, s{S_WU+1}
    s_mul_i32 s3, s{S_CB}, 192
    s_add_u32 s{SRDW}, s{SRDW}, s3
    s_addc_u32 s{SRDW+1}, s{SRDW+1}, 0
    s_and_b32 s{SRDW+1}, s{SRDW+1}, 0xffff
    s_sub_u32 s{SRDW+2}, {512*2752}, s3
    s_mov_b32 s{SRDW+3}, 0x20000
    s_cmp_ge_u32 s{S_CB}, 15
    s_cbranch_scc1 L_idle
    """)
    def issue_list(stage):
        st = stage + 3; L = []
        if st < 16:
            for i in range(3):
                t = f"s_add_u32 m0, s{sMW}, {(st % 4) * 12288 + i * 1024}\nbuffer_load_dwordx4 v{vWo[i]}, s[{SRDW}:{SRDW+3}], s{sWoff} offen lds"
                if i == 2:
                    t += f"\ns_add_u32 s{sWoff}, s{sWoff}, {32*2752}\ns_cmp_ge_u32 s{sWoff}, {512*2752}\ns_cselect_b32 s3, {512*2752}, 0\ns_sub_u32 s{sWoff}, s{sWoff}, s3"
                L.append((t, ("W", st)))
        if stage % 2 != 0 and st // 2 < 8:
            c = st // 2
            for ii in range(4):
                t = f"s_add_u32 m0, s{sMX}, {(c % 2) * 16384 + ii * 1024}\nbuffer_load_dwordx4 v{vXo[ii]}, s[{SRDX}:{SRDX+3}], s{sXoff} offen lds"
                if ii == 3: t += f"\ns_add_u32 s{sXoff}, s{sXoff}, 128\ns_and_b32 s{sXoff}, s{sXoff}, 1023"
                L.append((t, ("X", c)))
        return L
    G1ONLY = ENV("G1ONLY")
    L3, L2, L1 = issue_list(-3), issue_list(-2), issue_list(-1)
    NPRO = int(ENV("NPRO", "10"))
    allpro = L3 + L2 + L1
    if G1ONLY: stamp(a, "pre")
    for t, tag in allpro[:NPRO]:
        a(t); q.add(tag)
    pend0 = allpro[NPRO:]
    epoch_issue(a, vEp, vT); q.add("E")
    if G1ONLY: stamp(a, "iss")
    TS0 = int(ENV("TS0", "2")); TSN = int(ENV("TSN", "6")); TSD = int(ENV("TSD", "6"))
    a(wd_touch_addr(vTD))
    a(f"s_lshr_b32 s3, s{S_J}, 3")
    a(f"s_mul_i32 s4, s3, {65536 // TSN + 1}\ns_lshr_b32 s4, s4, 16\ns_mul_i32 s4, s4, {TSN}\ns_sub_u32 s{sTS}, s3, s4")
    a(f"""
    s_add_u32 s{sH}, s{S_WS}, {WS_H:#x}
    s_addc_u32 s{sH+1}, s{S_WS+1}, 0
    s_lshl_b32 s3, s{S_RB}, 2
    s_lshl_b32 s4, s{sWN}, 1
    s_add_u32 s3, s3, s4
    s_mul_i32 s3, s3, 86
    s_mul_i32 s4, s{S_CB}, 6
    s_mul_i32 s5, s{sWM}, 3
    s_add_u32 s{sFT0}, s4, s5          ; ft0
    s_add_u32 s3, s3, s{sFT0}
    s_lshl_b32 s3, s3, 10
    v_lshlrev_b32 v{vHa}, 4, v1
    v_add_u32 v{vHa}, s3, v{vHa}
    """)
    a(f"""
    v_bfe_u32 v{vT}, v1, 4, 1              ; mat
    v_lshrrev_b32 v{vT+1}, 5, v1           ; hh
    v_bfe_u32 v{vT+2}, v1, 2, 2            ; r
    v_lshl_add_u32 v{vT+2}, v{vT+1}, 3, v{vT+2}   ; 8hh + r
    v_mul_u32_u24 v{vT+2}, 192, v{vT+2}
    v_mul_u32_u24 v{vT+3}, 3072, v{vT}
    v_add_u32 v{vT+2}, v{vT+2}, v{vT+3}
    v_bfe_u32 v{vT+3}, v1, 1, 1            ; c>>1
    v_lshlrev_b32 v{vT+3}, 4, v{vT+3}
    v_and_b32 v{vT+4}, 1, v1
    v_lshlrev_b32 v{vT+4}, 3, v{vT+4}
    v_add3_u32 v{vT+2}, v{vT+2}, v{vT+3}, v{vT+4}
    s_mul_i32 s3, s{sWM}, 3
    """)
    for j in range(3):
        a(f"""
        s_add_u32 s4, s3, {j}
        v_xor_b32 v{vT+3}, s4, v{vT}
        v_lshl_add_u32 v{vAad[j]}, v{vT+3}, 5, v{vT+2}
        """)
    a(f"""
    v_and_b32 v{vT}, 31, v1
    v_bfe_u32 v{vT+2}, v{vT}, 1, 3
    s_lshl_b32 s3, s{sWN}, 13
    s_add_u32 s3, s3, {XL}
    v_lshlrev_b32 v{vT+3}, 7, v{vT}
    v_add_u32 v{vT+3}, s3, v{vT+3}
    """)
    for ks in range(4):
        a(f"""
        v_add_u32 v{vT+4}, {2*ks}, v{vT+1}
        v_xor_b32 v{vT+4}, v{vT+4}, v{vT+2}
        v_lshl_add_u32 v{vBad[ks]}, v{vT+4}, 4, v{vT+3}
        """)
    a(f"""
    v_lshrrev_b32 v{vT}, 4, v1
    v_xor_b32 v{vT}, v{vT}, v1
    v_and_b32 v{vT}, 1, v{vT}
    v_cmp_eq_u32 vcc, 0, v{vT}
    v_mov_b32 v{vT}, s{S_ONES}
    v_cndmask_b32 v{SEL}, 0, v{vT}, vcc
    v_mov_b32 v{SEL+1}, v{SEL}
    v_mov_b32 v{SEL+2}, v{SEL}
    v_mov_b32 v{SEL+3}, v{SEL}
    v_mov_b32 v{ONES}, s{S_ONES}
    v_mov_b32 v{ONES+1}, s{S_ONES}
    v_mov_b32 v{ONES+2}, s{S_ONES}
    v_mov_b32 v{ONES+3}, s{S_ONES}
    s_and_b32 s3, s{S_RB}, 3
    s_lshl_b32 s3, s3, 1
    s_add_u32 s{sCS}, s3, s{sWN}
    s_lshl_b32 s3, s{S_RB}, 7
    s_lshl_b32 s4, s{sWN}, 6
    s_add_u32 s3, s3, s4
    s_lshl_b32 s3, s3, 3
    s_add_u32 s3, s3, {WS_STATS:#x}
    v_and_b32 v{vT}, 31, v1
    v_lshl_add_u32 v{vSa}, v{vT}, 3, s3
    s_lshl_b32 s3, s{sFT0}, 10
    s_add_u32 s3, s3, {WS_P:#x}
    v_lshl_add_u32 v{vPa}, v{vT}, 5, s3
    v_lshrrev_b32 v{vT+1}, 5, v1
    v_lshl_add_u32 v{vPa}, v{vT+1}, 4, v{vPa}
    """)
    def a_reads(t):
        st = t // 2; A = AF[t % 2]; base = (st % 4) * 12288 + (t % 2) * 6144; L = []
        for j in range(3):
            L.append(f"ds_read_b64_tr_b16 v[{A+4*j}:{A+4*j+1}], v{vAad[j]} offset:{base}")
            L.append(f"ds_read_b64_tr_b16 v[{A+4*j+2}:{A+4*j+3}], v{vAad[j]} offset:{base+768}")
        return L
    def b_reads(c, kss):
        Bb = BF[c % 2]; L = []
        for ks in kss:
            for jn in range(2):
                L.append(f"ds_read_b128 v[{Bb+8*ks+4*jn}:{Bb+8*ks+4*jn+3}], v{vBad[ks]} offset:{(c%2)*16384 + jn*4096}")
        return L
    def xbar(st):
        need = [("W", st)] + ([("X", st // 2)] if st % 2 == 0 else [])
        a(f"s_waitcnt vmcnt({q.after(need)})")
        a("s_barrier")
    def late_loads():
        L = [(f"global_load_dwordx2 v[{vST[0]}:{vST[0]+1}], v{vSa}, s[{S_WS}:{S_WS+1}] sc1", "late")]
        L.append((f"global_load_dwordx2 v[{vST[1]}:{vST[1]+1}], v{vSa}, s[{S_WS}:{S_WS+1}] offset:256 sc1", "late"))
        for j in range(3):
            L.append((f"global_load_dwordx4 v[{PF+4*j}:{PF+4*j+3}], v{vPa}, s[{S_WS}:{S_WS+1}] offset:{j*1024} sc1", "late"))
        return L
    TAG_ST = 3
    LATE_ST = int(ENV("LATE_ST", "13"))
    xbar(0)
    stamp(a, "x0")
    pend = []
    pend += pend0 + issue_list(0)
    for r in b_reads(0, [0]) + a_reads(0): a(r)
    xst = (1, 2, 3, 4, 6, 8, 10, 12, 14) if G1ONLY else tuple(int(v) for v in ENV("XST", "8").split(","))
    FEW = ENV("FEW")
    W2SCHED = {13: (0, 1, 2), 14: (3, 4), 15: (5, 6, 7), 16: (8, 9)}
    for t in range(32):
        fill = []
        if t + 1 < 32:
            rd = a_reads(t + 1)
            if (t + 1) % 4 == 0: rd = rd + b_reads((t + 1) // 4, [0])
            if t % 4 == 0: rd = b_reads(t // 4, [1]) + a_reads(t + 1) + b_reads(t // 4, [2, 3])
            fill += rd
        a("s_waitcnt lgkmcnt(0)")
        A = AF[t % 2]; B = BF[(t // 4) % 2] + (t % 4) * 8
        k = 0
        plan = None
        for j in range(3):
            for jn in range(2):
                d = acc(j, jn)
                c = "0" if t == 0 else f"v[{d}:{d+15}]"
                a(f"v_mfma_f32_32x32x16_bf16 v[{d}:{d+15}], v[{A+4*j}:{A+4*j+3}], v[{B+4*jn}:{B+4*jn+3}], {c}")
                if k == 0 and t % 2 == 1:
                    st = (t + 1) // 2
                    if st < 16:
                        xbar(st)
                        if st in xst: stamp(a, f"x{st}")
                        pend += issue_list(st)
                        if not ENV("NOTOUCH"):
                            for pi_ in range(2):
                                k_ = st - TS0 - pi_ * TSD
                                if 0 <= k_ < TSN:
                                    lb = f"L_ts{st}_{pi_}"
                                    pend.append((f"s_cmp_eq_u32 s{sTS}, {k_}\ns_cbranch_scc0 {lb}\n" + wd_touch(pi_, vTD, vT + 1, vDUM) + f"\n{lb}:", None))
                        if st == TAG_ST:
                            tag_compute(a, vEp)
                    else:
                        a("s_barrier")
                    if not G1ONLY:
                        if st == LATE_ST: pend += late_loads()
                        if st == 13: pend.append((g2_setup_a(vT), None))
                        for s_ in W2SCHED.get(st, ()): pend += wdma_items(s_)
                if plan is None:
                    slots = [1, 2, 3, 4, 5] if t % 2 == 1 else [0, 1, 2, 3, 4, 5]
                    n = len(pend) if (t % 2 == 0 or t == 31) else (len(pend) + 1) // 2
                    plan = {}
                    for i in range(n):
                        sl = slots[min(len(slots) - 1, i * len(slots) // max(n, 1))]
                        plan[sl] = plan.get(sl, 0) + 1
                for _ in range(2):
                    if fill: a(fill.pop(0))
                for _ in range(plan.get(k, 0)):
                    tx, tg = pend.pop(0); a(tx)
                    if tg is not None: q.add(tg)
                k += 1
        while fill: a(fill.pop(0))
        assert not (t % 2 == 0 and pend), (t, pend)
        if t < 8:
            for j in range(3):
                a(f"s_cmp_eq_u32 s{sCS}, {j}")
                a(f"s_cbranch_scc0 L_cs{t}_{j}")
                c = "0" if t == 0 else f"v[{CD}:{CD+3}]"
                a(f"v_mfma_f32_16x16x32_bf16 v[{CD}:{CD+3}], v[{SEL}:{SEL+3}], v[{A+4*j}:{A+4*j+3}], {c}")
                a.label(f"L_cs{t}_{j}")
        if t == 8:
            a(f"s_cmp_ge_u32 s{sCS}, 3")
            a(f"s_cbranch_scc1 L_cs8")
            a(f"""
            s_mov_b64 vcc, 0xffff
            s_add_u32 s3, s{sFT0}, s{sCS}
            s_lshl_b32 s3, s3, 10
            s_lshr_b32 s4, s{S_RB}, 2
            s_lshl_b32 s4, s4, 3
            s_add_u32 s3, s3, s4
            s_add_u32 s3, s3, {WS_P:#x}
            v_and_b32 v{vT}, 31, v1
            v_lshl_add_u32 v{vT}, v{vT}, 5, s3
            v_cndmask_b32 v{vT+2}, v{CD+1}, v{CD}, vcc
            v_xor_b32 v{vT+3}, s{S_TAG}, v{vT+2}
            s_mov_b32 exec_hi, 0
            global_store_dwordx2 v{vT}, v[{vT+2}:{vT+3}], s[{S_WS}:{S_WS+1}] sc1
            s_mov_b64 exec, -1
            """)
            a.label("L_cs8")
            q.add("pst", False)
    stamp(a, "g1loop")
    if G1ONLY:
        a("s_branch L_done"); return
    a(g2_setup_b(vT))
    def preread(st):
        a(f"s_waitcnt vmcnt({q.after([('W2', st)])})")
        for r in wreads2(st): a(r)
    def wdma(st):
        for tx, tg in wdma_items(st):
            a(tx); q.add(tg)
    a(f"s_waitcnt vmcnt({q.after(['late'])})")
    def late_check():
        prs = [(vST[0], vST[0]+1), (vST[1], vST[1]+1)] + [(PF+4*j+2*h, PF+4*j+2*h+1) for j in range(3) for h in range(2)]
        tt = [vT, vT+1, vT+2, vT+3, vT+4, vT+5]
        for i, (x, y) in enumerate(prs[:6]): a(f"v_xor_b32 v{tt[i]}, v{x}, v{y}")
        a(f"v_min3_u32 v{vFv}, v{tt[0]}, v{tt[1]}, v{tt[2]}")
        a(f"v_max3_u32 v{tt[0]}, v{tt[0]}, v{tt[1]}, v{tt[2]}")
        a(f"v_min3_u32 v{vFv}, v{vFv}, v{tt[3]}, v{tt[4]}")
        a(f"v_max3_u32 v{tt[0]}, v{tt[0]}, v{tt[3]}, v{tt[4]}")
        a(f"v_xor_b32 v{tt[1]}, v{prs[6][0]}, v{prs[6][1]}")
        a(f"v_xor_b32 v{tt[2]}, v{prs[7][0]}, v{prs[7][1]}")
        a(f"v_min3_u32 v{vFv}, v{vFv}, v{tt[5]}, v{tt[1]}")
        a(f"v_max3_u32 v{tt[0]}, v{tt[0]}, v{tt[5]}, v{tt[1]}")
        a(f"v_min_u32 v{vFv}, v{vFv}, v{tt[2]}")
        a(f"v_max_u32 v{tt[0]}, v{tt[0]}, v{tt[2]}")
        a(f"v_cmp_ne_u32 vcc, s{S_TAG}, v{vFv}")
        a(f"v_cmp_ne_u32 s[4:5], s{S_TAG}, v{tt[0]}")
        a(f"s_or_b64 vcc, vcc, s[4:5]")
    late_check()
    a("s_cbranch_vccnz L_late_slow")
    a.label("L_late_ok")
    if not FEW: stamp(a, "late")
    BM = [ONES, SEL]
    a(f"s_mov_b32 s3, 0x01000100")
    for jn in range(2):
        a(f"v_perm_b32 v{BM[jn]}, v{vST[jn]}, v{vST[jn]}, s3")
    for jn in range(2):
        a(f"v_xor_b32 v{BM[jn]}, 0x80008000, v{BM[jn]}")
    for j in (2, 1, 0):
        p = PF + 4*j
        a(f"v_add_f32 v{p}, v{p}, v{p+2}")
        a(f"v_cvt_pk_bf16_f32 v{p+1}, v{p}, v{p}")
        a(f"v_lshlrev_b32 v{p+1}, 16, v{p+1}")
        a(f"v_sub_f32 v{p+1}, v{p}, v{p+1}")
        a(f"v_cvt_pk_bf16_f32 v{p}, v{p}, v{p+1}")
        a(f"v_mov_b32 v{p+1}, 0")
        a(f"v_mov_b32 v{p+2}, 0")
        a(f"v_mov_b32 v{p+3}, 0")
        for jn in range(2):
            d = acc(j, jn)
            a(f"v_mfma_f32_32x32x16_bf16 v[{d}:{d+15}], v[{PF+4*j}:{PF+4*j+3}], v[{BM[jn]}:{BM[jn]+3}], v[{d}:{d+15}]")
    a(f"""
    s_add_u32 s{sH2}, s{S_WS}, {WS_DUMMY:#x}
    s_addc_u32 s{sH2+1}, s{S_WS+1}, 0
    """)
    PRE_IN = [[0], [1], [2], [3], [], []]
    blk = 0
    for j in (2, 1, 0):
        a(f"s_add_u32 s5, s{sFT0}, {j}")
        a(f"s_cmp_ge_u32 s5, 86")
        a(f"s_cselect_b32 s6, s{sH2}, s{sH}")
        a(f"s_cselect_b32 s7, s{sH2+1}, s{sH+1}")
        for jn in range(2):
            d = acc(j, jn)
            for s_ in PRE_IN[blk]: preread(s_)
            for i in range(0, 8, 2):
                a(f"v_pk_mul_f32 v[{d+i}:{d+i+1}], v[{d+i}:{d+i+1}], v[{d+i+8}:{d+i+9}]")
            for i in range(4):
                a(f"v_cvt_pk_bf16_f32 v{d+8+i}, v{d+2*i}, v{d+2*i+1}")
            off = jn * 86 * 1024 + j * 1024
            a(f"v_add_u32 v{vT+jn}, {off}, v{vHa}")
            if ENV("NOHST"): a("s_nop 0")
            else: a(f"global_store_dwordx4 v{vT+jn}, v[{d+8}:{d+11}], s[6:7] {ENV('HST_SC', 'sc1')}")
            q.add("hst", not ENV("NOHST"))
            blk += 1
    if not FEW: stamp(a, "hst")
    for s_ in range(4, NSL): preread(s_)
    a("s_waitcnt lgkmcnt(0)")
    N1 = int(ENV("N1", "0"))
    for s_ in range(NSL, NSL + N1): wdma(s_)
    stamp(a, "g1end")
    def slow():
        a.label("L_late_slow")
        a("s_mov_b32 s6, 0")
        a.label("L_late_spin")
        a("s_sleep 2")
        for tx, tg in late_loads(): a(tx)
        a("s_add_u32 s6, s6, 1")
        a("s_waitcnt vmcnt(0)")
        late_check()
        a(f"s_cmp_ge_u32 s6, {SPIN}")
        a("s_cbranch_scc1 L_late_ok")
        a("s_cbranch_vccnz L_late_spin")
        a("s_branch L_late_ok")
    return slow

def idle_path(a):
    a.label("L_idle")
    epoch_issue(a, 25, 26)
    a(wd_touch_addr(158))
    a(wd_touch(0, 158, 27, 159)); a(wd_touch(1, 158, 27, 159))
    a(g2_setup_a(26))
    for st in range(NSL):
        for tx, tg in wdma_items(st): a(tx)
    a(g2_setup_b(26))
    a("s_waitcnt vmcnt(0)")
    tag_compute(a, 25)
    fh_off(a)
    wave_flag_store(a, 7, WS_FH, 26)
    for st in range(NSL):
        for r in wreads2(st): a(r)
        if st % 2 == 1:
            a("s_waitcnt lgkmcnt(0)")
            for s2 in (NSL + st - 1, NSL + st):
                for tx, tg in wdma_items(s2): a(tx)
    a("s_branch L_g2i")

def fh_off(a):
    a(f"""
    s_lshl_b32 s7, s{S_RB}, 4
    s_add_u32 s7, s7, s{S_CB}
    s_lshl_b32 s7, s7, 2
    s_add_u32 s7, s7, s{S_WAVE}
    s_lshl_b32 s7, s7, {FSH}
    """)

def g2(a, q):
    SRDW, SRDH = G2_SRDW, G2_SRDH
    sH0, sLB, sHoff = G2_sH0, G2_sLB, G2_sHoff
    sAOK = 66
    vHo = [6, 7]; vXo = 10; vTw = 3; vT = 13
    vAo = 2; vFa, vFv, vYa, vYv = 19, 20, 21, 22
    vRs = 23
    XD = WSL[2]; AOD = WSL[3]
    fh_off(a)
    setup = f"""
    s_mul_i32 s3, s{S_RT}, {2*86*1024}
    s_add_u32 s3, s3, {WS_H:#x}
    s_add_u32 s{SRDH}, s{S_WS}, s3
    s_addc_u32 s{SRDH+1}, s{S_WS+1}, 0
    s_and_b32 s{SRDH+1}, s{SRDH+1}, 0xffff
    s_mov_b32 s{SRDH+2}, {2*86*1024}
    s_mov_b32 s{SRDH+3}, 0x20000
    v_lshlrev_b32 v{vHo[0]}, 4, v1
    v_add_u32 v{vHo[1]}, {86*1024}, v{vHo[0]}
    s_lshr_b32 s3, s{S_RT}, 1
    s_lshl_b32 s3, s3, 6
    s_and_b32 s4, s{S_RT}, 1
    s_lshl_b32 s4, s4, 1
    s_add_u32 s3, s3, s4
    v_lshrrev_b32 v{vT}, 1, v1
    v_lshlrev_b32 v{vT}, 2, v{vT}
    v_and_b32 v{vT+1}, 1, v1
    v_add3_u32 v{vT}, v{vT}, v{vT+1}, s3
    v_lshlrev_b32 v{vT}, {FSH}, v{vT}
    v_add_u32 v{vFa}, {WS_FH:#x}, v{vT}
    s_mov_b32 s8, 0xff
    s_cmp_eq_u32 s{S_WAVE}, 1
    s_cselect_b32 s8, 0x7f80, s8
    s_cmp_eq_u32 s{S_WAVE}, 2
    s_cselect_b32 s8, 0x3fc000, s8
    s_cmp_eq_u32 s{S_WAVE}, 3
    s_cselect_b32 s8, 0x1fe00000, s8
    s_mov_b32 s9, 0
    s_lshl_b32 s3, s{S_CT}, 5
    s_lshl_b32 s4, s{S_WAVE}, 2
    s_add_u32 s3, s3, s4
    s_lshl_b32 s3, s3, 2
    s_lshr_b32 s4, s{S_RT}, 4
    s_add_u32 s3, s3, s4
    v_bfe_u32 v{vT}, v1, 1, 2
    v_bfe_u32 v{vT+1}, v1, 3, 1
    v_lshl_add_u32 v{vT}, v{vT+1}, 4, v{vT}
    v_lshlrev_b32 v{vT}, 1, v{vT}
    v_and_b32 v{vT+1}, 1, v1
    v_add_u32 v{vT}, v{vT}, v{vT+1}
    v_lshl_add_u32 v{vT}, v{vT}, 1, s3
    v_lshlrev_b32 v{vT}, {FSY}, v{vT}
    v_add_u32 v{vYa}, {WS_FY:#x}, v{vT}
    v_and_b32 v{vT}, 15, v1
    v_lshrrev_b32 v{vT+1}, 4, v1
    s_lshl_b32 s3, s{S_RT}, 6
    s_lshl_b32 s4, s{S_WAVE}, 4
    s_add_u32 s3, s3, s4
    s_lshl_b32 s3, s3, 10
    s_lshl_b32 s4, s{S_CT}, 7
    s_add_u32 s3, s3, s4
    v_lshlrev_b32 v{vXo}, 10, v{vT}
    v_lshl_add_u32 v{vXo}, v{vT+1}, 4, v{vXo}
    v_add_u32 v{vXo}, s3, v{vXo}
    s_lshl_b32 s3, s{S_RT}, 6
    s_lshl_b32 s4, s{S_WAVE}, 4
    s_add_u32 s3, s3, s4
    s_lshl_b32 s3, s3, 3
    s_add_u32 s3, s3, {WS_STATS:#x}
    v_lshl_add_u32 v{vRs}, v{vT}, 3, s3
    v_lshrrev_b32 v{vT}, 3, v0
    v_and_b32 v{vT+1}, 7, v0
    s_lshl_b32 s3, s{S_CT}, 18
    s_lshl_b32 s4, s{S_RT}, 7
    s_add_u32 s3, s3, s4
    s_add_u32 s3, s3, {WS_AO:#x}
    v_lshlrev_b32 v{vAo}, 12, v{vT}
    v_lshl_add_u32 v{vAo}, v{vT+1}, 4, v{vAo}
    v_add_u32 v{vAo}, s3, v{vAo}
    v_and_b32 v{vT}, 7, v{vT}
    v_mul_u32_u24 v{vTw}, 144, v{vT}
    v_lshl_add_u32 v{vTw}, v{vT+1}, 4, v{vTw}
    s_add_u32 s3, s{sLB}, 0x10000
    v_add_u32 v{vTw}, s3, v{vTw}
    """
    a(setup)
    a(f"s_waitcnt vmcnt({q.after(['hst'])})")
    wave_flag_store(a, 7, WS_FH, vT)
    q.add("fh")
    if not ENV("FEW"): stamp(a, "fh")
    for s_ in range(NSL + int(ENV("N1", "0")), 2 * NSL):
        for tx, tg in wdma_items(s_): a(tx)
    a("s_branch L_g2p")
    a.label("L_g2i")
    a(setup)
    a.label("L_g2p")
    a("s_mov_b32 s6, 0")
    a.label("L_hp")
    a("s_mov_b64 exec, s[8:9]")
    a(f"global_load_dword v{vFv}, v{vFa}, s[{S_WS}:{S_WS+1}] sc1")
    a("s_add_u32 s6, s6, 1")
    a("s_waitcnt vmcnt(0) lgkmcnt(0)")
    a(f"v_cmp_ne_u32 vcc, s{S_TAG}, v{vFv}")
    a("s_mov_b64 exec, -1")
    a(f"s_cmp_ge_u32 s6, {SPIN}")
    a("s_cbranch_scc1 L_hp_ok")
    a("s_cbranch_vccnz L_hp")
    a.label("L_hp_ok")
    if not ENV("FEW"): stamp(a, "hpoll")
    q.q = []
    def wdma(st):
        for tx, tg in wdma_items(st):
            a(tx); q.add(tg)
    for st in range(NSL, 2 * NSL): q.add(("W2", st))
    def hload(st):
        for nt in range(2):
            r = HRB[st % HD] + nt * 4
            a(f"buffer_load_dwordx4 v[{r}:{r+3}], v{vHo[nt]}, s[{SRDH}:{SRDH+3}], s{sHoff} offen sc1")
            q.add(("H", st))
        a(f"s_add_u32 s{sHoff}, s{sHoff}, 1024")
    a(f"s_mov_b32 s{sHoff}, s{sH0}")
    for st in range(HD): hload(st)
    def ao_loads(track=True):
        a(f"v_add_u32 v{vT+5}, {32*4096}, v{vAo}")
        a(f"global_load_dwordx4 v[{AOD}:{AOD+3}], v{vAo}, s[{S_WS}:{S_WS+1}] sc1")
        a(f"global_load_dwordx4 v[{AOD+4}:{AOD+7}], v{vT+5}, s[{S_WS}:{S_WS+1}] sc1")
    FY_AT = int(ENV("FY_AT", "9")); AO_AT = int(ENV("AO_AT", "16"))
    for t in range(NS):
        need = [("H", t)] + ([("W2", t + 1)] if NSL <= t + 1 < NS else []) + (["fy"] if t == AO_AT else [])
        a(f"s_waitcnt vmcnt({q.after(need)})")
        if t in (0, 14) and not ENV("FEW"): stamp(a, f"h{t}")
        H = HRB[t % HD]
        if t >= NSL: a("s_waitcnt lgkmcnt(0)")
        rd = wreads2(t + 1) if NSL <= t + 1 < NS else []
        A = areg2(t)
        if t == 0:
            a(f"s_cmp_ge_u32 s{S_WAVE}, 2")
            a("s_cbranch_scc0 L_g2_sk0")
            for i in range(8): a(f"v_mov_b32 v{H+i}, 0")
            a.label("L_g2_sk0")
        if t == AO_AT:
            a(f"s_mov_b32 s{sAOK}, 0")
            a("s_mov_b64 exec, 0xffff")
            a(f"v_cmp_ne_u32 vcc, s{S_TAG}, v{vYv}")
            a("s_mov_b64 exec, -1")
            a("s_cbranch_vccnz L_ao_no")
            a(f"s_mov_b32 s{sAOK}, 1")
            ao_loads()
            a.label("L_ao_no")
            q.add("ao", False)
        for mt in range(2):
            for nt in range(2):
                d = ACC2 + (mt * 2 + nt) * 16
                c = "0" if t == 0 else f"v[{d}:{d+15}]"
                a(f"v_mfma_f32_32x32x16_bf16 v[{d}:{d+15}], v[{A+4*mt}:{A+4*mt+3}], v[{H+4*nt}:{H+4*nt+3}], {c}")
                if rd: a(rd.pop(0))
        if NSL <= t and NSL + t < NS:
            wdma(NSL + t)
        if t + HD < NS:
            hload(t + HD)
        if t == 4:
            a(f"global_load_dwordx4 v[{XD}:{XD+3}], v{vXo}, s[{S_X}:{S_X+1}]")
            a(f"global_load_dwordx4 v[{XD+4}:{XD+7}], v{vXo}, s[{S_X}:{S_X+1}] offset:64")
            a(f"global_load_dword v{vRs}, v{vRs}, s[{S_WS}:{S_WS+1}] sc1")
            q.add("x"); q.add("x"); q.add("x")
        if t == FY_AT:
            a("s_mov_b64 exec, 0xffff")
            a(f"global_load_dword v{vYv}, v{vYa}, s[{S_WS}:{S_WS+1}] sc1")
            a("s_mov_b64 exec, -1")
            q.add("fy")
    if not ENV("FEW"): stamp(a, "g2loop")
    a(f"""
    v_and_b32 v{vT}, 31, v1                ; n
    v_lshrrev_b32 v{vT+1}, 5, v1           ; hh
    v_and_b32 v{vT+2}, 15, v1
    v_xor_b32 v{vT+2}, v{vT+2}, v{vT+1}
    v_lshlrev_b32 v{vT+2}, 4, v{vT+2}
    v_and_b32 v{vT+1}, 7, v{vT}
    v_lshl_add_u32 v{vT+2}, v{vT+1}, 8, v{vT+2}
    v_lshrrev_b32 v{vT+1}, 3, v{vT}
    v_lshl_add_u32 v{vT+2}, v{vT+1}, 13, v{vT+2}
    v_add_u32 v{vT+2}, s{sLB}, v{vT+2}
    """)
    for mt in range(2):
        for g in range(4):
            t = vT + 3 if (g & 1) else vT
            a(f"v_xor_b32 v{t}, {(8*mt + 2*g) << 4}, v{vT+2}")
            for nt in range(2):
                d = ACC2 + (mt * 2 + nt) * 16 + 4 * g
                a(f"ds_write_b128 v{t}, v[{d}:{d+3}] offset:{nt*32768}")
    a(f"s_cmp_eq_u32 s{sAOK}, 0")
    a("s_cbranch_scc1 L_ao_slow")
    a.label("L_ao_ok")
    a("s_waitcnt vmcnt(0)")
    a(f"""
    ds_write_b128 v{vTw}, v[{AOD}:{AOD+3}]
    ds_write_b128 v{vTw}, v[{AOD+4}:{AOD+7}] offset:8192
    """)
    a("s_waitcnt lgkmcnt(0)")
    a("s_barrier")
    if not ENV("FEW"): stamp(a, "g2bar")
    P = 24; AOT = 88; E = 128
    a(f"""
    v_and_b32 v{vRs}, 0xffff0000, v{vRs}
    v_rcp_f32 v{vRs}, v{vRs}
    v_mul_f32 v{vRs}, v{vRs}, v{vRs}
    v_and_b32 v{vT}, 15, v1               ; i
    v_lshrrev_b32 v{vT+1}, 4, v1          ; g4
    v_lshrrev_b32 v{vT+2}, 3, v{vT}
    s_lshl_b32 s3, s{S_WAVE}, 1
    v_add_u32 v{vT+2}, s3, v{vT+2}
    v_lshlrev_b32 v{vT+2}, 13, v{vT+2}
    v_and_b32 v{vT+3}, 7, v{vT}
    v_lshl_add_u32 v{vT+2}, v{vT+3}, 8, v{vT+2}
    v_lshlrev_b32 v{vT+3}, 1, v{vT+1}
    v_xor_b32 v{vT+3}, v{vT+3}, v{vT}
    v_lshl_add_u32 v{vT+2}, v{vT+3}, 4, v{vT+2}
    ; T address: g4*2048 + 65536 + p*8192 + (4q + r)*144 + (16w + 4c)*2
    v_bfe_u32 v{vT+3}, v1, 2, 2           ; r
    v_mul_u32_u24 v{vT+3}, 144, v{vT+3}
    v_lshlrev_b32 v{vT+1}, 11, v{vT+1}
    v_and_b32 v{vT}, 3, v1
    v_lshlrev_b32 v{vT}, 3, v{vT}
    s_lshl_b32 s3, s{S_WAVE}, 5
    s_add_u32 s3, s3, 0x10000
    v_add3_u32 v{vT+3}, v{vT+3}, v{vT}, s3
    v_add_u32 v{vT+3}, v{vT+3}, v{vT+1}
    """)
    for p in range(2):
        for qq in range(2):
            a(f"ds_read_b64_tr_b16 v[{AOT+(2*p+qq)*2}:{AOT+(2*p+qq)*2+1}], v{vT+3} offset:{p*8192 + 4*qq*144}")
    for p in range(2):
        for qq in range(2):
            t = vT if (qq & 1) else vT + 1
            a(f"v_xor_b32 v{t}, {(8*p + qq) << 4}, v{vT+2}")
            for w in range(4):
                r = P + (2*p+qq)*16 + w*4
                a(f"ds_read_b128 v[{r}:{r+3}], v{t} offset:{w*2048}")
    for p in range(2):
        for qq in range(2):
            k = 2*p + qq
            a(f"s_waitcnt lgkmcnt({min(15, 4*(3-k))})")
            r = P + k*16
            for h2 in range(2):
                a(f"v_pk_add_f32 v[{r+2*h2}:{r+2*h2+1}], v[{r+2*h2}:{r+2*h2+1}], v[{r+4+2*h2}:{r+4+2*h2+1}]")
                a(f"v_pk_add_f32 v[{r+8+2*h2}:{r+8+2*h2+1}], v[{r+8+2*h2}:{r+8+2*h2+1}], v[{r+12+2*h2}:{r+12+2*h2+1}]")
            for h2 in range(2):
                a(f"v_pk_add_f32 v[{r+2*h2}:{r+2*h2+1}], v[{r+2*h2}:{r+2*h2+1}], v[{r+8+2*h2}:{r+8+2*h2+1}]")
            e = E + k * 20
            for h2 in range(2):
                xr = XD + 4*p + 2*qq + h2; ar = AOT + 2*k + h2; e2 = e + 10*h2
                a(f"v_lshlrev_b32 v{e2+0}, 16, v{xr}")
                a(f"v_and_b32 v{e2+1}, 0xffff0000, v{xr}")
                a(f"v_lshlrev_b32 v{e2+2}, 16, v{ar}")
                a(f"v_and_b32 v{e2+3}, 0xffff0000, v{ar}")
                a(f"v_pk_add_f32 v[{e2}:{e2+1}], v[{e2}:{e2+1}], v[{e2+2}:{e2+3}]")
                a(f"v_cvt_pk_bf16_f32 v{e2+4}, v{e2}, v{e2+1}")
                a(f"v_mul_f32 v{r+2*h2}, v{r+2*h2}, v{vRs}")
                a(f"v_mul_f32 v{r+2*h2+1}, v{r+2*h2+1}, v{vRs}")
                a(f"v_cvt_pk_bf16_f32 v{e2+5}, v{r+2*h2}, v{r+2*h2+1}")
                a(f"v_lshlrev_b32 v{e2+6}, 16, v{e2+4}")
                a(f"v_and_b32 v{e2+7}, 0xffff0000, v{e2+4}")
                a(f"v_lshlrev_b32 v{e2+8}, 16, v{e2+5}")
                a(f"v_and_b32 v{e2+9}, 0xffff0000, v{e2+5}")
                a(f"v_pk_add_f32 v[{e2+6}:{e2+7}], v[{e2+6}:{e2+7}], v[{e2+8}:{e2+9}]")
                a(f"v_cvt_pk_bf16_f32 v{xr}, v{e2+6}, v{e2+7}")
        a(f"global_store_dwordx4 v{vXo}, v[{XD+4*p}:{XD+4*p+3}], s[{S_OUT}:{S_OUT+1}] offset:{64*p} {ENV('OUT_SC', '')}")
    stamp(a, "g2end")
    a("s_branch L_done")
    a.label("L_ao_slow")
    a("s_mov_b32 s6, 0")
    a.label("L_ao_spin")
    a("s_mov_b64 exec, 0xffff")
    a(f"global_load_dword v{vYv}, v{vYa}, s[{S_WS}:{S_WS+1}] sc1")
    a("s_add_u32 s6, s6, 1")
    a("s_waitcnt vmcnt(0)")
    a(f"v_cmp_ne_u32 vcc, s{S_TAG}, v{vYv}")
    a("s_mov_b64 exec, -1")
    a(f"s_cmp_ge_u32 s6, {SPIN}")
    a("s_cbranch_scc1 L_ao_go")
    a("s_cbranch_vccz L_ao_go")
    a("s_sleep 2")
    a("s_branch L_ao_spin")
    a.label("L_ao_go")
    ao_loads()
    a("s_branch L_ao_ok")

def gemm_role(a):
    q = VQ()
    slow = g1(a, q)
    if ENV("G1ONLY"):
        a.label("L_idle")
        a("s_branch L_done")
        return
    g2(a, q)
    slow()
    idle_path(a)

def build():
    import ssm4
    a = Asm()
    lab = NAME + "_kernel"
    head = "; @launch grid=(512,1,1) block=(256,1,1) lds=81920\n"
    a.raw('.amdgcn_target "amdgcn-amd-amdhsa--gfx950"')
    a.raw(".text")
    kernel_header(a, lab)
    exit_if_ge(a, 512, "L_exit")
    stamp(a, "RTstart"); stamp(a, "start")
    prologue(a)
    a("s_cmp_ge_u32 s2, 256")
    a("s_cbranch_scc1 L_ssm")
    a(f"s_mov_b32 s{S_J}, s2")
    gemm_role(a)
    namesG = list(gen.ST.names); nG = gen.ST.n
    a.label("L_ssm")
    gen.ST.n = 2; gen.ST.names = gen.ST.names[:2]
    a(f"s_sub_u32 s{S_J}, s2, 256")
    if ENV("NOSSM"): a("s_branch L_done")
    ssm4.ssm_role(a, sys.modules[__name__])
    namesS = list(gen.ST.names); nS = gen.ST.n
    a.label("L_done")
    if gen.STAMPS:
        a("s_memrealtime s[100:101]")
        gen.ST.n = 16
        dump_stamps(a, 0)
        print("GEMM stamps", namesG); print("SSM stamps", namesS)
    a.label("L_exit")
    a("s_endpgm")
    return head + a.render() + '.section .rodata,"a"\n' + kernel_desc(lab)

if __name__ == "__main__":
    if os.environ.get("STAMPS"): gen.STAMPS = True
    src = build()
    out = sys.argv[1] if len(sys.argv) > 1 else f"cdna_kernels/{NAME}.s"
    open(out, "w").write(src)
    print("wrote", out, len(src), "bytes")
```

```python
import os
from gen import *
import gen
from ssm import KC, KCS, KCH, UB, UCH, RED, TABCH, TABB, TROW, XCH, L2E_HI, INV2PI, cmul, exp_bf16, A_ROWS
import ssm2
from ssm2 import PRM, EPV, sCH, sMH, sDT, sD
ENV = lambda k, d=None: os.environ.get(k, d)

LNB = XCH
S_JL = 47
UA, UAD = 192, 184
XNP, STV, VXA, VSA, VPF, VPA = 224, 232, 236, 237, 238, 239
S_UOK = 64

def ln_part(a, K):
    S_TAG = K.S_TAG
    X0, X1 = 4, 8
    SUM = [12, 13, 14, 15]; TMP = [16, 17, 18, 19]
    F0, F1 = 20, 28
    for k in range(4):
        for (X, sm) in ((X0, 12), (X1, 14)):
            c = "0" if k == 0 else f"v{sm}"
            a(f"v_dot2_f32_bf16 v{sm}, v{X+k}, s{S_ONES}, {c}")
            c = "0" if k == 0 else f"v{sm+1}"
            a(f"v_dot2_f32_bf16 v{sm+1}, v{X+k}, v{X+k}, {c}")
    for (X, F) in ((X0, F0), (X1, F1)):
        for k in range(4):
            a(f"v_lshlrev_b32 v{F+2*k}, 16, v{X+k}")
            a(f"v_and_b32 v{F+2*k+1}, 0xffff0000, v{X+k}")
    wave_allreduce(a, SUM, TMP)
    M = [36, 37]; RS = [38, 39]; MS = [STV, STV + 2]
    for r, sm in enumerate((12, 14)):
        a(f"v_mul_f32 v{sm}, 0x3b000000, v{sm}")
        a(f"v_mul_f32 v{sm+1}, 0x3b000000, v{sm+1}")
    for r, sm in enumerate((12, 14)):
        a(f"v_fma_f32 v{sm+1}, -v{sm}, v{sm}, v{sm+1}")
        a(f"v_cvt_pk_bf16_f32 v{M[r]}, v{sm}, v{sm+1}")
    for r, sm in enumerate((12, 14)):
        a(f"v_and_b32 v{sm+1}, 0xffff0000, v{M[r]}")
        a(f"v_lshlrev_b32 v{M[r]}, 16, v{M[r]}")
        a(f"v_add_f32 v{sm+1}, 0x3727c5ac, v{sm+1}")
    for r, sm in enumerate((12, 14)):
        a(f"v_cvt_pk_bf16_f32 v{sm+1}, v{sm+1}, v{sm+1}")
    for r, sm in enumerate((12, 14)):
        a(f"v_lshlrev_b32 v{sm+1}, 16, v{sm+1}")
    for r, sm in enumerate((12, 14)):
        a(f"v_sqrt_f32 v{sm+1}, v{sm+1}")
    for r, sm in enumerate((12, 14)):
        a(f"v_cvt_pk_bf16_f32 v{sm+1}, v{sm+1}, v{sm+1}")
    for r, sm in enumerate((12, 14)):
        a(f"v_lshlrev_b32 v{sm+1}, 16, v{sm+1}")
    for r, sm in enumerate((12, 14)):
        a(f"v_rcp_f32 v{RS[r]}, v{sm+1}")
        a(f"v_lshrrev_b32 v{MS[r]}, 16, v{M[r]}")
        a(f"v_or_b32 v{MS[r]}, v{MS[r]}, v{sm+1}")
    a("s_waitcnt vmcnt(4)")
    K.tag_compute(a, EPV)
    a(f"""
    s_lshl_b32 s4, s{S_JL}, 6
    s_lshl_b32 s5, s{S_WAVE}, 4
    s_add_u32 s4, s4, s5
    s_add_u32 s4, s4, {WS_STATS:#x}
    v_mov_b32 v{VSA}, s4
    v_xor_b32 v{MS[0]+1}, s{S_TAG}, v{MS[0]}
    v_xor_b32 v{MS[1]+1}, s{S_TAG}, v{MS[1]}
    """)
    stats_store(a)
    for r, (F, X) in enumerate(((F0, X0), (F1, X1))):
        for k in range(8):
            a(f"v_sub_f32 v{F+k}, v{F+k}, v{M[r]}")
        for k in range(4):
            a(f"v_cvt_pk_bf16_f32 v{X+k}, v{F+2*k}, v{F+2*k+1}")
        for k in range(4):
            a(f"v_lshlrev_b32 v{F+2*k}, 16, v{X+k}")
            a(f"v_and_b32 v{F+2*k+1}, 0xffff0000, v{X+k}")
        for k in range(8):
            a(f"v_mul_f32 v{F+k}, v{F+k}, v{RS[r]}")
        for k in range(4):
            a(f"v_cvt_pk_bf16_f32 v{X+k}, v{F+2*k}, v{F+2*k+1}")
    a(f"""
    s_mul_i32 s4, s{S_WAVE}, {2*1088}
    s_add_u32 s4, s4, {LNB}
    v_lshlrev_b32 v3, 4, v1
    v_add_u32 v3, s4, v3
    ds_write_b128 v3, v[{X0}:{X0+3}]
    ds_write_b128 v3, v[{X1}:{X1+3}] offset:1088
    v_bfe_u32 v4, v1, 2, 2            ; r
    v_mul_u32_u24 v4, 1088, v4
    v_lshrrev_b32 v5, 4, v1           ; G
    v_lshlrev_b32 v5, 5, v5           ; 16G*2
    v_and_b32 v6, 3, v1
    v_lshlrev_b32 v6, 3, v6           ; 4c*2
    v_add3_u32 v4, v4, v5, v6
    s_lshl_b32 s4, s{S_WAVE}, 8       ; 128w*2
    s_add_u32 s4, s4, {LNB}
    v_add_u32 v4, s4, v4
    s_lshl_b32 s4, s{S_JL}, 13
    s_lshl_b32 s5, s{S_WAVE}, 11      ; 128w*16
    s_add_u32 s4, s4, s5
    s_add_u32 s4, s4, {WS_XNA:#x}
    v_lshlrev_b32 v5, 4, v1
    v_add_u32 v{VXA}, s4, v5
    s_waitcnt lgkmcnt(0)
    s_barrier
    ds_read_b64_tr_b16 v[{XNP}:{XNP+1}], v4
    ds_read_b64_tr_b16 v[{XNP+2}:{XNP+3}], v4 offset:{4*1088}
    ds_read_b64_tr_b16 v[{XNP+4}:{XNP+5}], v4 offset:128
    ds_read_b64_tr_b16 v[{XNP+6}:{XNP+7}], v4 offset:{4*1088+128}
    """)

def stats_store(a):
    if ENV("NOMEM"): return
    a(f"""
    s_mov_b64 exec, 1
    global_store_dwordx4 v{VSA}, v[{STV}:{STV+3}], s[{S_WS}:{S_WS+1}] sc1
    s_mov_b64 exec, -1""")

def xn_store_txt():
    if ENV("NOMEM"): return "s_waitcnt lgkmcnt(0)"
    return (f"s_waitcnt lgkmcnt(0)\n"
            f"global_store_dwordx4 v{VXA}, v[{XNP}:{XNP+3}], s[{S_WS}:{S_WS+1}] sc1\n"
            f"global_store_dwordx4 v{VXA}, v[{XNP+4}:{XNP+7}], s[{S_WS}:{S_WS+1}] offset:1024 sc1")

def fln_flag(a, K):
    if ENV("NOMEM") or ENV("NOFLN"): return
    a(f"""
    s_waitcnt vmcnt(0)
    s_lshl_b32 s7, s{S_WAVE}, 8
    s_add_u32 s7, s7, s{S_JL}
    s_lshl_b32 s7, s7, {K.FSL}
    """)
    K.wave_flag_store(a, 7, K.WS_FLN, 242)

def u_addr(a, K):
    a(f"""
    s_lshl_b32 s5, s{sCH}, 6
    v_add_u32 v{UAD+1}, s5, v1
    v_lshrrev_b32 v{UAD}, 1, v{UAD+1}
    v_lshlrev_b32 v{UAD}, 13, v{UAD}
    v_and_b32 v{UAD+1}, 1, v{UAD+1}
    v_lshlrev_b32 v{UAD+1}, 4, v{UAD+1}
    s_lshl_b32 s4, s{S_J}, 5
    s_add_u32 s4, s4, {WS_XNA:#x}
    v_add3_u32 v{UAD}, v{UAD}, v{UAD+1}, s4
    v_add_u32 v{UAD+1}, 0x80000, v{UAD}
    v_add_u32 v{UAD+2}, 0x100000, v{UAD}
    v_add_u32 v{UAD+3}, 0x180000, v{UAD}
    s_lshr_b32 s4, s{S_J}, 6
    s_lshl_b32 s4, s4, 8
    s_lshl_b32 s5, s{sCH}, 5
    s_add_u32 s4, s4, s5
    v_and_b32 v{VPA}, 31, v1
    v_lshrrev_b32 v{VPF}, 5, v1
    v_lshl_add_u32 v{VPA}, v{VPF}, 6, v{VPA}
    v_add_u32 v{VPA}, s4, v{VPA}
    v_lshlrev_b32 v{VPA}, {K.FSL}, v{VPA}
    v_add_u32 v{VPA}, {K.WS_FLN:#x}, v{VPA}
    """)

def poll_loads(a):
    if ENV("NOMEM") or ENV("NOPOLL"): return
    FSL = int(ENV("FSL", "4")); assert FSL <= 4
    a(f"global_load_dword v{VPF}, v{VPA}, s[{S_WS}:{S_WS+1}] sc1")
    a(f"global_load_dword v{VPF+2}, v{VPA}, s[{S_WS}:{S_WS+1}] offset:{128 << FSL} sc1")

def poll_cmp(a, K):
    if ENV("NOMEM") or ENV("NOPOLL"):
        a("s_mov_b64 vcc, 0"); return
    a(f"v_cmp_ne_u32 vcc, s{K.S_TAG}, v{VPF}")
    a(f"v_cmp_ne_u32 s[4:5], s{K.S_TAG}, v{VPF+2}")
    a("s_or_b64 vcc, vcc, s[4:5]")

def u_loads(a):
    if ENV("NOMEM") or ENV("NOU"): return
    for q in range(4):
        a(f"global_load_dwordx4 v[{UA+4*q}:{UA+4*q+3}], v{UAD+q}, s[{S_WS}:{S_WS+1}] sc1")

def store_u(a):
    a(f"""
    s_lshl_b32 s5, s{sCH}, 6
    v_add_u32 v9, s5, v1
    v_lshrrev_b32 v8, 1, v9
    v_lshlrev_b32 v8, 4, v8
    v_and_b32 v9, 1, v9
    v_mul_u32_u24 v9, {UCH}, v9
    v_add_u32 v8, v8, v9
    v_add_u32 v8, {UB + 512}, v8
    """)
    for q in range(4):
        a(f"ds_write_b128 v8, v[{UA+4*q}:{UA+4*q+3}] offset:{q*1024}")

def zero_pads(a):
    a(f"""
    v_mov_b32 v8, 0
    v_mov_b32 v9, 0
    v_mov_b32 v10, 0
    v_mov_b32 v11, 0
    s_mul_i32 s4, s{sCH}, {UCH}
    s_add_u32 s4, s4, {UB}
    v_lshlrev_b32 v12, 4, v1
    v_add_u32 v13, 4096, v12
    v_cmp_gt_u32 vcc, 32, v1
    v_cndmask_b32 v12, v13, v12, vcc
    v_add_u32 v12, s4, v12
    s_mov_b32 exec_hi, 15
    ds_write_b128 v12, v[8:11]
    s_mov_b64 exec, -1
    """)

def kgen_tables(a, hooks):
    if ENV("NOCOMP"):
        a("s_sleep 22")
        for k_ in sorted(hooks):
            for h in hooks[k_]: h()
        a("s_sleep 40")
        stamp(a, "tables")
        a(f"s_mul_i32 s4, s{sCH}, {TABCH}")
        a("s_sleep 12")
        return
    a(f"""
    s_lshl_b32 s5, s{sCH}, 4
    s_lshr_b32 s{sDT}, s{sDT}, s5
    s_lshl_b32 s{sDT}, s{sDT}, 16
    s_lshr_b32 s{sD}, s{sD}, s5
    s_lshl_b32 s{sD}, s{sD}, 16
    v_mov_b32 v8, s{sDT}
    """)
    exp_bf16(a, 8, 9, 10)
    for i, r in enumerate((4, 5, 6, 7)): a(f"v_lshlrev_b32 v{r}, 16, v{PRM+i}")
    exp_bf16(a, 4, 9, 10)
    W1, W8, W256, W2, W4, W16 = 16, 18, 20, 22, 24, 26
    C = 12
    a(f"""
    v_mul_f32 v14, v4, v8
    v_mul_f32 v14, {L2E_HI | 0x80000000:#x}, v14       ; -Are*dt*log2e
    v_mul_f32 v15, v5, v8
    v_mul_f32 v15, {INV2PI:#x}, v15
    v_add_f32 v8, v8, v8
    v_mul_f32 v{C}, v6, v8
    v_mul_f32 v{C+1}, v7, v8
    """)
    for (W, p) in ((W1, 1.0), (W8, 8.0), (W256, 256.0)):
        if p == 1.0:
            a(f"v_exp_f32 v9, v14"); a(f"v_cos_f32 v{W}, v15"); a(f"v_sin_f32 v{W+1}, v15")
        else:
            lit = {8.0: "0x41000000", 256.0: "0x43800000"}[p]
            a(f"v_mul_f32 v10, {lit}, v14"); a(f"v_mul_f32 v11, {lit}, v15")
            a(f"v_exp_f32 v9, v10"); a(f"v_cos_f32 v{W}, v11"); a(f"v_sin_f32 v{W+1}, v11")
        a(f"v_mul_f32 v{W}, v{W}, v9"); a(f"v_mul_f32 v{W+1}, v{W+1}, v9")
    cmul(a, W2, W1, W1); cmul(a, W16, W8, W8); cmul(a, W4, W2, W2)
    a(f"""
    s_mul_i32 s4, s{sCH}, {TABCH}
    s_lshl_b32 s5, s{sMH}, 8
    s_add_u32 s4, s4, s5
    v_lshlrev_b32 v3, 2, v1
    v_add_u32 v3, s4, v3
    """)
    pk = [28, 29, 30, 31]; pki = [0]
    def emitA(kap, x):
        t = pk[pki[0] % 4]; pki[0] += 1
        a(f"v_cvt_pk_bf16_f32 v{t}, v{x}, -v{x+1}")
        a(f"ds_write_b32 v3, v{t} offset:{A_ROWS[kap]*TROW}")
    def emitB(j, x):
        t = pk[pki[0] % 4]; pki[0] += 1
        a(f"v_cvt_pk_bf16_f32 v{t}, v{x}, v{x+1}")
        a(f"ds_write_b32 v3, v{t} offset:{TABB + j*TROW}")
    E = [32, 34, 36, 38]
    a(f"v_mov_b32 v{E[0]}, 1.0"); a(f"v_mov_b32 v{E[0]+1}, 0")
    emitB(0, E[0]); emitB(1, W8)
    prev = {0: E[0], 1: W8}
    R = {0: C}
    pool = iter(range(44, 100, 2))
    plan = [(1, 0, W1), (256, 0, W256), (2, 1, W1), (512, 256, W256), (3, 2, W1), (258, 256, W2), (4, 3, W1), (768, 512, W256),
            (5, 4, W1), (260, 256, W4), (6, 5, W1), (1024, 768, W256), (7, 6, W1), (262, 258, W4), (264, 256, W8), (1280, 1024, W256),
            (516, 512, W4), (520, 512, W8), (1536, 1280, W256), (772, 768, W4), (776, 768, W8), (1792, 1536, W256),
            (1032, 1024, W8), (1288, 1280, W8), (1544, 1536, W8), (1800, 1792, W8)]
    emitA(0, C)
    j = 2; pi = 0; it = 0
    while j < 32 or pi < len(plan):
        if j < 32:
            d = E[(j % 2) + 2 * ((j // 2) % 2)]
            cmul(a, d, prev[j % 2], W16)
            pend = (j, d); prev[j % 2] = d; j += 1
        else: pend = None
        outs = []
        for _ in range(1 if j < 32 else 4):
            if pi < len(plan):
                kap, src, w = plan[pi]; pi += 1
                d2 = next(pool); R[kap] = d2
                cmul(a, d2, R[src], w); outs.append((kap, d2))
        if pend: emitB(*pend)
        for kap, d2 in outs: emitA(kap, d2)
        it += 1
        for h in hooks.pop(it, ()): h()
    for k_ in sorted(hooks):
        for h in hooks[k_]: h()
    stamp(a, "tables")
    a(f"""
    v_and_b32 v4, 31, v1
    v_mul_u32_u24 v4, {TROW}, v4
    v_lshrrev_b32 v5, 5, v1
    v_lshlrev_b32 v5, 4, v5
    v_add3_u32 v4, v4, v5, s4
    s_waitcnt lgkmcnt(0)
    """)
    D = 32; FA, FB = 64, 96
    for tt in range(8):
        a(f"ds_read_b128 v[{FA+4*tt}:{FA+4*tt+3}], v4 offset:{tt*32}")
        a(f"ds_read_b128 v[{FB+4*tt}:{FB+4*tt+3}], v4 offset:{TABB + tt*32}")
    for tt in range(8):
        a(f"s_waitcnt lgkmcnt({min(15, 2*(7-tt))})")
        c = "0" if tt == 0 else f"v[{D}:{D+15}]"
        a(f"v_mfma_f32_32x32x16_bf16 v[{D}:{D+15}], v[{FA+4*tt}:{FA+4*tt+3}], v[{FB+4*tt}:{FB+4*tt+3}], {c}")

def kgen_rest(a, K, hook_b1=None):
    D = 32
    a(f"""
    s_lshl_b32 s4, s{sCH}, 12
    s_add_u32 s4, s4, {XCH}
    v_lshlrev_b32 v3, 4, v1
    v_add_u32 v3, s4, v3
    s_cmp_eq_u32 s{sMH}, 0
    s_cbranch_scc1 L_kg_a
    """)
    for g in range(4):
        a(f"ds_write_b128 v3, v[{D+4*g}:{D+4*g+3}] offset:{g*1024}")
    poll_loads(a)
    a.label("L_kg_a")
    if hook_b1: hook_b1()
    a("s_waitcnt lgkmcnt(0)")
    a("s_barrier")
    a(f"s_cmp_eq_u32 s{sMH}, 0")
    a("s_cbranch_scc1 L_kg_m0")
    a("s_waitcnt vmcnt(0)")
    poll_cmp(a, K)
    a(f"s_mov_b32 s{S_UOK}, 0")
    a("s_cbranch_vccz L_kg_u1")
    if ENV("POLL2", "1") == "1":
        poll_loads(a)
        a("s_waitcnt vmcnt(0)")
        poll_cmp(a, K)
        a("s_cbranch_vccz L_kg_u1")
    a("s_branch L_kg_b")
    a.label("L_kg_u1")
    a(f"s_mov_b32 s{S_UOK}, 1")
    u_loads(a)
    a("s_branch L_kg_b")
    a.label("L_kg_m0")
    for g in range(4):
        a(f"ds_read_b128 v[{64+4*g}:{64+4*g+3}], v3 offset:{g*1024}")
    a(f"""
    s_mul_i32 s4, s{sCH}, {KCH}
    s_add_u32 s4, s4, {KC + 4112 - 512*7}
    v_and_b32 v4, 31, v1
    v_lshlrev_b32 v4, 4, v4
    v_sub_u32 v4, s4, v4
    v_and_b32 v5, 1, v1
    v_cmp_eq_u32 vcc, 1, v5
    """)
    a("s_waitcnt lgkmcnt(0)")
    for i in range(0, 16, 2):
        a(f"v_pk_add_f32 v[{D+i}:{D+i+1}], v[{D+i}:{D+i+1}], v[{64+i}:{64+i+1}]")
    def blk(b, vals, P):
        for k, (lo, hi) in enumerate(vals):
            a(f"v_cvt_pk_bf16_f32 v{P+k}, v{lo}, v{hi}")
        a(f"ds_write_b128 v4, v[{P}:{P+3}] offset:{512*(7-b)}")
    d = lambda i: D + i
    for bb in range(4):
        a(f"v_cndmask_b32 v{80+bb}, v{d(3+2*bb)}, v{d(4+2*bb)}, vcc")
    a("s_mov_b32 exec_lo, -1")
    a("s_mov_b32 exec_hi, 0")
    blk(0, [(d(7), d(6)), (d(5), d(4)), (d(3), d(2)), (d(1), d(0))], 64)
    blk(1, [(d(12), d(11)), (d(10), d(10)), (d(10), d(9)), (d(8), d(8))], 68)
    blk(2, [(d(15), d(15)), (d(14), d(14)), (d(14), d(13)), (d(13), d(13))], 72)
    a("s_mov_b32 exec_lo, 0")
    a("s_mov_b32 exec_hi, -1")
    blk(3, [(d(2), d(2)), (d(1), d(1)), (d(1), d(0)), (d(0), d(0))], 64 + 20)
    for bb in range(4):
        L, H = d(3 + 2 * bb), d(4 + 2 * bb)
        blk(4 + bb, [(H, H), (H, 80 + bb), (L, L), (L, L)], 88 + 4 * bb)
    a("s_mov_b64 exec, -1")
    a(f"""
    v_mov_b32 v64, 0
    v_mov_b32 v65, 0
    v_mov_b32 v66, 0
    v_mov_b32 v67, 0
    s_mul_i32 s4, s{sCH}, {KCH}
    s_add_u32 s4, s4, {KC}
    v_lshlrev_b32 v4, 4, v1
    v_add_u32 v5, 4096, v4
    v_cmp_gt_u32 vcc, 2, v1
    v_cndmask_b32 v4, v5, v4, vcc
    v_add_u32 v4, s4, v4
    s_mov_b64 exec, 0xfffff
    ds_write_b128 v4, v[64:67]
    s_mov_b64 exec, -1
    """)
    zero_pads(a)
    a("s_waitcnt lgkmcnt(0)")
    a.label("L_kg_b")
    a("s_barrier")
    stamp(a, "copy0")
    a(f"""
    s_mul_i32 s4, s{sCH}, {KCH}
    s_lshl_b32 s5, s{sMH}, 10
    s_add_u32 s4, s4, s5
    s_add_u32 s4, s4, {KC}
    v_lshlrev_b32 v4, 4, v1
    v_add_u32 v4, s4, v4
    """)
    for ps in range(3):
        Wd = 64 + 24 * ps
        a(f"ds_read_b128 v[{Wd}:{Wd+3}], v4 offset:{ps*2048}")
        a(f"ds_read_b128 v[{Wd+4}:{Wd+7}], v4 offset:{ps*2048+16}")
    for ps in range(3):
        Wd = 64 + 24 * ps
        if ps == 2:
            a(f"s_cmp_eq_u32 s{sMH}, 0")
            a("s_cbranch_scc0 L_kg_c")
            a("s_mov_b64 exec, 0xfffff")
            a("s_waitcnt lgkmcnt(6)")
        else:
            a(f"s_waitcnt lgkmcnt({4 - 2*ps + 3*ps})")
        for k in range(4):
            a(f"v_alignbit_b32 v{Wd+8+k}, v{Wd+k+1}, v{Wd+k}, 16")
            a(f"v_mov_b32 v{Wd+12+k}, v{Wd+k+1}")
            a(f"v_alignbit_b32 v{Wd+16+k}, v{Wd+k+2}, v{Wd+k+1}, 16")
        for c in range(3):
            a(f"ds_write_b128 v4, v[{Wd+8+4*c}:{Wd+8+4*c+3}] offset:{ps*2048 + (c+1)*KCS}")
        if ps == 2:
            a("s_mov_b64 exec, -1")
            a("s_branch L_kg_e")
            a.label("L_kg_c")
    a(f"s_cmp_eq_u32 s{S_UOK}, 1")
    a("s_cbranch_scc1 L_kg_d")
    a("s_mov_b32 s6, 0")
    a.label("L_u_spin")
    poll_loads(a)
    a("s_add_u32 s6, s6, 1")
    a("s_waitcnt vmcnt(0)")
    poll_cmp(a, K)
    a(f"s_cmp_ge_u32 s6, {K.SPIN}")
    a("s_cbranch_scc1 L_u_go")
    a("s_cbranch_vccz L_u_go")
    a("s_sleep 2")
    a("s_branch L_u_spin")
    a.label("L_u_go")
    u_loads(a)
    a.label("L_kg_d")
    a("s_waitcnt vmcnt(0)")
    store_u(a)
    a.label("L_kg_e")

def conv(a, K):
    S_TAG = K.S_TAG
    sPAR = 61
    sAO, sAOB = 66, 68
    vF, vG, vF0, vG0 = 4, 5, 6, 7
    ACC = 8
    FS = [40, 104]; GS = [72, 136]
    a(f"""
    v_and_b32 v168, 15, v1            ; m / n
    v_lshrrev_b32 v169, 4, v1         ; q
    v_and_b32 v170, 3, v168
    v_sub_u32 v170, 3, v170
    v_mul_u32_u24 v170, {KCS}, v170
    v_lshrrev_b32 v171, 2, v168
    v_lshlrev_b32 v171, 3, v171
    v_sub_u32 v170, v170, v171
    v_lshl_add_u32 v170, v169, 4, v170
    s_mul_i32 s4, s{sCH}, {KCH}
    s_add_u32 s4, s4, {KC + 4120 - 4096}
    v_add_u32 v{vF0}, s4, v170
    s_lshl_b32 s5, s{sPAR}, 6
    v_subrev_u32 v{vF}, s5, v{vF0}
    v_lshlrev_b32 v170, 5, v168
    v_lshl_add_u32 v170, v169, 4, v170
    s_mul_i32 s4, s{sCH}, {UCH}
    s_add_u32 s4, s4, {UB}
    v_add_u32 v{vG0}, s4, v170
    v_subrev_u32 v{vG}, s5, v{vG0}
    """)
    def loads(k):
        F = FS[k % 2]; Gr = GS[k % 2]
        for i in range(8):
            off = 64 * (64 - 1 - 2 * k - 8 * i)
            a(f"ds_read_b128 v[{Gr+4*i}:{Gr+4*i+3}], v{vG} offset:{512*(i+1) - 64 - 128*k}")
            a(f"ds_read_b64 v[{F+4*i}:{F+4*i+1}], v{vF} offset:{off}")
            a(f"ds_read_b64 v[{F+4*i+2}:{F+4*i+3}], v{vF} offset:{off+8}")
    def mm(k):
        F = FS[k % 2]; Gr = GS[k % 2]
        for i in range(8):
            for aa in range(8 - i):
                t = i + aa; d = ACC + 4 * t
                c = "0" if (k == 0 and i == 0) else f"v[{d}:{d+3}]"
                a(f"v_mfma_f32_16x16x32_bf16 v[{d}:{d+3}], v[{F+4*i}:{F+4*i+3}], v[{Gr+4*aa}:{Gr+4*aa+3}], {c}")
    loads(0)
    for k in range(4):
        if ENV("PRIO_CK") and k == int(ENV("PRIO_CK")): a("s_setprio 3")
        a("s_waitcnt lgkmcnt(0)")
        if k < 3: loads(k + 1)
        else:
            a(f"ds_read_b64 v[{FS[0]}:{FS[0]+1}], v{vF0} offset:4096")
            a(f"ds_read_b64 v[{FS[0]+2}:{FS[0]+3}], v{vF0} offset:{4096+8}")
            a(f"s_lshl_b32 s5, s{sPAR}, 11")
            a(f"v_add_u32 v{vG}, s5, v{vG0}")
            for tt in range(4):
                a(f"ds_read_b128 v[{GS[0]+4*tt}:{GS[0]+4*tt+3}], v{vG} offset:{512*(tt+1)}")
        mm(k)
    a("s_waitcnt lgkmcnt(0)")
    stamp(a, "convloop")
    if ENV("PRIO_F"): a(f"s_setprio {ENV('PRIO_F')}")
    ws_base(a, sAO, WS_AO)
    a(f"s_cmp_eq_u32 s{sPAR}, 0")
    a("s_cbranch_scc0 L_cv_p1")
    def finish(par):
        for tt in range(4):
            d = ACC + 4 * (4 * par + tt)
            a(f"v_mfma_f32_16x16x32_bf16 v[{d}:{d+3}], v[{FS[0]}:{FS[0]+3}], v[{GS[0]+4*tt}:{GS[0]+4*tt+3}], v[{d}:{d+3}]")
        a(f"""
        s_lshl_b32 s4, s{S_WAVE}, 12
        s_add_u32 s4, s4, {RED}
        v_lshlrev_b32 v170, 4, v1
        v_add_u32 v171, s4, v170
        s_xor_b32 s4, s{S_WAVE}, 1
        s_lshl_b32 s4, s4, 12
        s_add_u32 s4, s4, {RED}
        v_add_u32 v170, s4, v170
        """)
        for tt in range(4):
            d = ACC + 4 * (4 * (1 - par) + tt)
            a(f"ds_write_b128 v171, v[{d}:{d+3}] offset:{tt*1024}")
        a(f"""
        v_lshlrev_b32 v172, 5, v168
        v_lshl_add_u32 v172, v169, 3, v172
        s_mul_i32 s4, s{sCH}, {UCH}
        s_add_u32 s4, s4, {UB + 512 + par*2048}
        v_add_u32 v173, s4, v172
        """)
        for tt in range(4):
            a(f"ds_read_b64 v[{72+2*tt}:{72+2*tt+1}], v173 offset:{tt*512}")
        a("s_waitcnt lgkmcnt(0)")
        a("s_barrier")
        for tt in range(4):
            a(f"ds_read_b128 v[{40+4*tt}:{40+4*tt+3}], v170 offset:{tt*1024}")
        a(f"""
        s_lshl_b32 s4, s{S_J}, 1
        s_add_u32 s4, s4, s{sCH}
        s_lshl_b32 s4, s4, 12
        s_add_u32 s4, s4, {par*2048}
        v_add_u32 v172, s4, v172
        """)
        for tt in range(4):
            u = 72 + 2 * tt; T = 80 + 8 * tt
            for h2 in range(2):
                a(f"v_lshlrev_b32 v{T+2*h2}, 16, v{u+h2}")
                a(f"v_and_b32 v{T+2*h2+1}, 0xffff0000, v{u+h2}")
            for e in range(4):
                a(f"v_mul_f32 v{T+e}, s{sD}, v{T+e}")
            a(f"v_cvt_pk_bf16_f32 v{T+4}, v{T}, v{T+1}")
            a(f"v_cvt_pk_bf16_f32 v{T+5}, v{T+2}, v{T+3}")
            for h2 in range(2):
                a(f"v_lshlrev_b32 v{T+2*h2}, 16, v{T+4+h2}")
                a(f"v_and_b32 v{T+2*h2+1}, 0xffff0000, v{T+4+h2}")
        for tt in range(4):
            d = ACC + 4 * (4 * par + tt); p = 40 + 4 * tt; T = 80 + 8 * tt
            a(f"s_waitcnt lgkmcnt({3 - tt})")
            a(f"v_pk_add_f32 v[{d}:{d+1}], v[{d}:{d+1}], v[{p}:{p+1}]")
            a(f"v_pk_add_f32 v[{d+2}:{d+3}], v[{d+2}:{d+3}], v[{p+2}:{p+3}]")
            a(f"v_cvt_pk_bf16_f32 v{p}, v{d}, v{d+1}")
            a(f"v_cvt_pk_bf16_f32 v{p+1}, v{d+2}, v{d+3}")
            for h2 in range(2):
                a(f"v_lshlrev_b32 v{d+2*h2}, 16, v{p+h2}")
                a(f"v_and_b32 v{d+2*h2+1}, 0xffff0000, v{p+h2}")
            a(f"v_pk_add_f32 v[{d}:{d+1}], v[{d}:{d+1}], v[{T}:{T+1}]")
            a(f"v_pk_add_f32 v[{d+2}:{d+3}], v[{d+2}:{d+3}], v[{T+2}:{T+3}]")
            a(f"v_cvt_pk_bf16_f32 v{p+2}, v{d}, v{d+1}")
            a(f"v_cvt_pk_bf16_f32 v{p+3}, v{d+2}, v{d+3}")
            a(f"global_store_dwordx2 v172, v[{p+2}:{p+3}], s[{sAO}:{sAO+1}] offset:{tt*512} sc1")
    finish(0)
    a("s_branch L_cv_end")
    a.label("L_cv_p1")
    finish(1)
    a.label("L_cv_end")
    stamp(a, "ao_st")
    a("s_waitcnt vmcnt(0)")
    a(f"s_lshl_b32 s7, s{S_J}, 2")
    a(f"s_add_u32 s7, s7, s{S_WAVE}")
    a(f"s_lshl_b32 s7, s7, {K.FSY}")
    K.wave_flag_store(a, 7, K.WS_FY, 170)

def ssm_role(a, K):
    S_TAG = K.S_TAG
    a(f"""
    s_setprio {ENV("PRIO_S", "3")}
    s_and_b32 s3, s{S_J}, 7
    s_lshr_b32 s4, s{S_J}, 3
    s_lshl_b32 s3, s3, 5
    s_add_u32 s{S_J}, s3, s4
    s_mov_b32 s{S_JL}, s{S_J}
    """)
    a(f"""
    s_lshl_b32 s3, s{S_JL}, 13
    s_lshl_b32 s4, s{S_WAVE}, 11
    s_add_u32 s3, s3, s4              ; row0*1024
    v_lshlrev_b32 v3, 4, v1
    v_add_u32 v3, s3, v3
    s_lshr_b32 s{sCH}, s{S_WAVE}, 1
    s_and_b32 s{sMH}, s{S_WAVE}, 1
    s_lshl_b32 s4, s{S_J}, 1
    s_add_u32 s4, s4, s{sCH}
    s_lshl_b32 s4, s4, 8
    s_lshl_b32 s5, s{sMH}, 7
    s_add_u32 s4, s4, s5
    v_lshlrev_b32 v12, 1, v1
    v_add_u32 v12, s4, v12
    v_mov_b32 v13, 0
    s_lshl_b32 s3, s{S_J}, 2
    s_waitcnt lgkmcnt(0)
    global_load_dwordx4 v[4:7], v3, s[{S_X}:{S_X+1}]
    global_load_dwordx4 v[8:11], v3, s[{S_X}:{S_X+1}] offset:1024
    global_load_dword v{EPV}, v13, s[{S_WS}:{S_WS+1}] sc1
    global_load_ushort v{PRM}, v12, s[{S_LOGA}:{S_LOGA+1}]
    global_load_ushort v{PRM+1}, v12, s[{S_AIM}:{S_AIM+1}]
    global_load_ushort v{PRM+2}, v12, s[{S_CRE}:{S_CRE+1}]
    global_load_ushort v{PRM+3}, v12, s[{S_CIM}:{S_CIM+1}]
    s_load_dword s{sDT}, s[{S_LOGDT}:{S_LOGDT+1}], s3
    s_load_dword s{sD}, s[{S_DSK}:{S_DSK+1}], s3
    """)
    u_addr(a, K)
    a("s_waitcnt vmcnt(5)")
    stamp(a, "xload")
    ln_part(a, K)
    XN_IT = int(ENV("XN_IT", "0")); FLN_IT = int(ENV("FLN_IT", "20"))
    nst = 1
    if XN_IT == 0:
        a(xn_store_txt()); nst += 2
    if ENV("NOMEM"): nst = 0
    stamp(a, "ln")
    if ENV("EXIT_LN"): a("s_branch L_done")
    a(f"s_setprio {ENV('PRIO_K', ENV('PRIO_S', '3'))}")
    a(f"s_waitcnt vmcnt({nst})")
    hooks = {}
    if XN_IT > 0: hooks.setdefault(XN_IT, []).append(lambda: a(xn_store_txt()))
    hb1 = None
    if FLN_IT <= 40: hooks.setdefault(FLN_IT, []).append(lambda: fln_flag(a, K))
    else: hb1 = lambda: fln_flag(a, K)
    kgen_tables(a, hooks)
    stamp(a, "kmfma")
    if ENV("PRIO_R"): a(f"s_setprio {ENV('PRIO_R')}")
    kgen_rest(a, K, hb1)
    stamp(a, "kgen_end")
    if ENV("EXIT_KG"): a("s_branch L_done")
    a("s_waitcnt lgkmcnt(0)")
    a("s_barrier")
    stamp(a, "u_done")
    a(f"s_setprio {ENV('PRIO_C', '3')}")
    conv(a, K)
    stamp(a, "conv_end")
    a(f"""
    s_cmp_eq_u32 s{S_J}, 0
    s_cbranch_scc0 L_done
    v_lshlrev_b32 v208, {K.FSH + 2}, v0
    v_add_u32 v204, {K.WS_FH:#x}, v208
    v_add_u32 v205, {1 << K.FSH}, v204
    v_add_u32 v206, {2 << K.FSH}, v204
    v_add_u32 v207, {3 << K.FSH}, v204
    global_load_dword v200, v204, s[{S_WS}:{S_WS+1}] sc1
    global_load_dword v201, v205, s[{S_WS}:{S_WS+1}] sc1
    global_load_dword v202, v206, s[{S_WS}:{S_WS+1}] sc1
    global_load_dword v203, v207, s[{S_WS}:{S_WS+1}] sc1
    s_waitcnt vmcnt(0)
    """)
    K.spin_check(a, [204, 205, 206, 207], [200, 201, 202, 203], "L_ce")
    a(f"""
    s_barrier
    s_cmp_eq_u32 s{S_WAVE}, 0
    s_cbranch_scc0 L_done
    v_add_u32 v209, 1, v{EPV}
    v_mov_b32 v208, 0
    s_mov_b64 exec, 1
    global_store_dword v208, v209, s[{S_WS}:{S_WS+1}] sc1
    s_mov_b64 exec, -1
    """)
```
